```python
import torch

def _softmax(x, axis=-1):
    return torch.softmax(x, dim=axis)

def _gelu(x):
    return torch.nn.functional.gelu(x, approximate='tanh')

def _silu(x):
    return torch.nn.functional.silu(x)

def _sigmoid(x):
    return torch.sigmoid(x)

def _layernorm(x, axis=-1, eps=1e-05):
    m = x.mean(dim=axis, keepdim=True)
    v = x.var(dim=axis, keepdim=True, unbiased=False)
    return (x - m) / torch.sqrt(v + eps)

def _scatter_add(tgt, idx, src, axis=0):
    return tgt.clone().index_add_(axis, idx, src)

def _segment_sum(src, seg, n):
    out = torch.zeros((n,) + src.shape[1:], dtype=src.dtype)
    return out.index_add_(0, seg, src)

def _pad(x, pw):
    flat = tuple((v for pair in reversed(pw) for v in pair))
    return torch.nn.functional.pad(x, flat)
kernel_name = 'adaLN_cond__sliding_block__swiglu_ffn__prompt'

def setup_inputs():

    _w = lambda a: (lambda t: t.to(torch.bfloat16) if t.is_floating_point() else t)(torch.as_tensor(a))

    def _A_setup():
        B, S, D = (1, 2048, 640)
        return {'x': _w((lambda *s: torch.randn(*s, dtype=torch.bfloat16) * 0.05)(B, S, D)), 'wqkv': _w((lambda *s: torch.randn(*s, dtype=torch.bfloat16) * 0.05)(D, 3 * D)), 'wo': _w((lambda *s: torch.randn(*s, dtype=torch.bfloat16) * 0.05)(D, D))}
    _A_in = _A_setup()

    def _B_setup():
        B, S, D, F = (1, 2048, 640, 1728)
        return {'x': _w((lambda *s: torch.randn(*s, dtype=torch.bfloat16) * 0.05)(B, S, D)), 'w_gate': _w((lambda *s: torch.randn(*s, dtype=torch.bfloat16) * 0.05)(D, F)), 'w_up': _w((lambda *s: torch.randn(*s, dtype=torch.bfloat16) * 0.05)(D, F)), 'w_down': _w((lambda *s: torch.randn(*s, dtype=torch.bfloat16) * 0.05)(F, D))}
    _B_in = _B_setup()
    return {'A_x': _A_in['x'], 'A_wqkv': _A_in['wqkv'], 'A_wo': _A_in['wo'], 'B_x': _B_in['x'], 'B_w_gate': _B_in['w_gate'], 'B_w_up': _B_in['w_up'], 'B_w_down': _B_in['w_down'], 'c': _w((lambda *s: torch.randn(*s, dtype=torch.bfloat16) * 0.1)(1, 640) * 8.0), 'w_mod': _w((lambda *s: torch.randn(*s, dtype=torch.bfloat16) * 0.1)(640, 6 * 640) * 640 ** (-0.5) * 8.0)}

def reference(A_x, A_wqkv, A_wo, B_x, B_w_gate, B_w_up, B_w_down, c, w_mod):

    def _A_ref(x, wqkv, wo):
        B, S, D = x.shape
        H = 32
        Dh = D // H
        W = 256
        qkv = (lambda x, *d: x.permute(*d))((x @ wqkv).reshape(B, S, 3, H, Dh), 2, 0, 3, 1, 4)
        q, k, v = (qkv[0], qkv[1], qkv[2])
        scores = torch.einsum('bhqd,bhkd->bhqk', q, k) * Dh ** (-0.5)
        idx = torch.arange(S)
        mask = (idx[:, None] - idx[None, :] >= 0) & (idx[:, None] - idx[None, :] < W)
        scores = torch.where(mask[None, None], scores, -1000000000.0)
        p = _softmax(scores, axis=-1)
        o = torch.einsum('bhqk,bhkd->bhqd', p, v)
        return (lambda x, *d: x.permute(*d))(o, 0, 2, 1, 3).reshape(B, S, D) @ wo

    def _B_ref(x, w_gate, w_up, w_down):
        g = _silu(x @ w_gate)
        u = x @ w_up
        return g * u @ w_down
    x = A_x
    mod = (_silu(c) @ w_mod).reshape(c.shape[0], 6, 1, -1)
    sa, ca, ga, sb, cb, gb = (mod[:, 0].clone(), mod[:, 1].clone(), mod[:, 2].clone(), mod[:, 3].clone(), mod[:, 4].clone(), mod[:, 5].clone())
    h = _layernorm(x, axis=-1) * (1 + ca) + sa
    x = x + ga * _A_ref(h, A_wqkv, A_wo)
    h = _layernorm(x, axis=-1) * (1 + cb) + sb
    x = x + gb * _B_ref(h, B_w_gate, B_w_up, B_w_down)
    return x
```

```python
import re

class Reg:
    def __init__(self, kind, idx, n=1):
        self.kind, self.idx, self.n = kind, idx, n
    def __getitem__(self, k):
        if isinstance(k, slice):
            a = k.start or 0; b = k.stop if k.stop is not None else self.n
            assert 0 <= a < b <= self.n, (a, b, self.n)
            return Reg(self.kind, self.idx + a, b - a)
        assert 0 <= k < self.n, (k, self.n)
        return Reg(self.kind, self.idx + k, 1)
    def __str__(self):
        if self.n == 1: return f"{self.kind}{self.idx}"
        return f"{self.kind}[{self.idx}:{self.idx+self.n-1}]"
    __repr__ = __str__
    def __format__(self, spec): return str(self)
    def __len__(self): return self.n

class Alloc:
    def __init__(self, kind, start, end):
        self.kind, self.end = kind, end
        self.free = [True]*end
        for i in range(start): self.free[i] = False
        self.hi = start
    def __call__(self, n=1, align=None):
        if align is None: align = 1 if n == 1 else (2 if n < 4 or self.kind != 's' else 4)
        i = 0
        while i + n <= self.end:
            if i % align == 0 and all(self.free[i:i+n]):
                for j in range(i, i+n): self.free[j] = False
                self.hi = max(self.hi, i+n)
                return Reg(self.kind, i, n)
            i += 1
        raise RuntimeError(f"out of {self.kind} regs for {n}")
    def release(self, *rs):
        for r in rs:
            for j in range(r.idx, r.idx + r.n):
                assert not self.free[j], f"double free {r}"
                self.free[j] = True

_REG_RE = re.compile(r'^(-?)(?:abs\()?\|?([vas])(?:(\d+)|\[(\d+):(\d+)\])\|?\)?$')
def regs_of(op):
    op = op.strip()
    if op in ('vcc',): return {('s', 106), ('s', 107)}
    if op == 'vcc_lo': return {('s', 106)}
    if op == 'vcc_hi': return {('s', 107)}
    if op == 'exec': return {('s', 126), ('s', 127)}
    if op == 'exec_lo': return {('s', 126)}
    if op == 'exec_hi': return {('s', 127)}
    if op == 'm0': return {('s', 124)}
    m = _REG_RE.match(op)
    if not m: return set()
    k = m.group(2)
    if m.group(3) is not None: return {(k, int(m.group(3)))}
    return {(k, i) for i in range(int(m.group(4)), int(m.group(5)) + 1)}

TRANS = ('v_exp_f32', 'v_log_f32', 'v_rcp_f32', 'v_rsq_f32', 'v_sqrt_f32', 'v_sin_f32', 'v_cos_f32', 'v_rcp_iflag_f32')
class Ins:
    def __init__(self, text):
        self.text = text
        t = text.split(';')[0].strip()
        self.label = None; self.op = None
        self.defs = set(); self.uses = set()
        if t.endswith(':'):
            self.label = t[:-1]; return
        if t.startswith('.') or not t: return
        parts = t.split(None, 1)
        op = parts[0]
        for suf in ('_e32', '_e64', '_dpp', '_sdwa'):
            if op.endswith(suf): op = op[:-len(suf)]
        self.op = op
        rest = parts[1] if len(parts) > 1 else ''
        toks = [x.strip() for x in rest.split(',')]
        ops = []; mods = ''
        for i, x in enumerate(toks):
            if not x: continue
            if x.startswith('op_sel') or x.startswith('neg_') or re.match(r'^[01]\]?', x) and mods:
                mods += ' ' + x; continue
            sp = x.split(None, 1)
            ops.append(sp[0])
            if len(sp) > 1: mods += ' ' + sp[1]
        self.ops, self.mods = ops, mods
        self.is_mfma = op.startswith('v_mfma')
        self.is_valu = op.startswith('v_') and not self.is_mfma
        self.is_salu = op.startswith('s_') and not op.startswith(('s_load', 's_buffer_load', 's_waitcnt', 's_nop', 's_barrier', 's_endpgm', 's_branch', 's_cbranch', 's_memtime', 's_memrealtime', 's_sleep', 's_setprio', 's_atomic'))
        self.is_vmem = op.startswith(('buffer_', 'global_', 'flat_'))
        self.is_ds = op.startswith('ds_')
        self.is_trans = op in TRANS
        self.is_dpp = any(k in mods for k in ('row_shr', 'row_shl', 'row_ror', 'row_bcast', 'quad_perm', 'row_mirror', 'row_half_mirror', 'wave_', 'row_newbcast'))
        self.is_ldsdma = self.is_vmem and (' lds' in ' ' + mods or 'load_lds' in op)
        R = [regs_of(o) for o in ops]
        U = lambda l: set().union(*l) if l else set()
        if self.is_mfma:
            self.defs = R[0]; self.srcA, self.srcB, self.srcC = R[1], R[2], R[3]
            self.uses = R[1] | R[2] | R[3]
            self.passes = 8 if '32x32' in op else 4
        elif self.is_valu:
            if op.startswith('v_cmp'):
                self.defs = R[0]; self.uses = U(R[1:])
                if op.startswith('v_cmpx'): self.defs |= regs_of('exec')
            elif op in ('v_add_co_u32', 'v_sub_co_u32', 'v_addc_co_u32', 'v_subb_co_u32', 'v_mad_u64_u32', 'v_div_scale_f32'):
                self.defs = R[0] | R[1]; self.uses = U(R[2:])
            elif op.startswith('v_permlane') and 'swap' in op or op == 'v_swap_b32':
                self.defs = R[0] | R[1]; self.uses = R[0] | R[1]
            elif op == 'v_nop': pass
            else:
                self.defs = R[0]; self.uses = U(R[1:])
                if op in ('v_fmac_f32', 'v_dot2c_f32_bf16', 'v_writelane_b32', 'v_pk_fmac_f16') or self.is_dpp: self.uses |= R[0]
        elif self.is_ds:
            if op.startswith(('ds_read', 'ds_bpermute', 'ds_permute', 'ds_swizzle')) or '_rtn' in op:
                self.defs = R[0]; self.uses = U(R[1:])
            else: self.uses = U(R)
        elif self.is_vmem:
            if self.is_ldsdma: self.uses = U(R) | regs_of('m0')
            elif '_load' in op: self.defs = R[0]; self.uses = U(R[1:])
            elif 'atomic' in op:
                self.uses = U(R)
                if 'sc0' in mods: self.defs = R[0]
            elif op.startswith(('buffer_wbl2', 'buffer_inv')): pass
            else:
                self.uses = U(R)
                self.store_data = R[0] if op.startswith('buffer_') else R[1]
        elif op.startswith('s_'):
            if op.startswith(('s_cmp', 's_bitcmp')): self.uses = U(R)
            elif op.startswith(('s_cbranch', 's_branch', 's_waitcnt', 's_nop', 's_barrier', 's_endpgm', 's_sleep', 's_setprio')): pass
            else:
                self.defs = R[0] if R else set(); self.uses = U(R[1:])
                if 'saveexec' in op: self.defs |= regs_of('exec')
    def states(self):
        if self.op is None: return 0
        if self.op == 's_nop': return int(self.ops[0], 0) + 1
        return 1

def need(p, c):
    n = 0
    V = lambda s: {x for x in s if x[0] in 'va'}
    S = lambda s: {x for x in s if x[0] == 's'}
    if p.is_mfma:
        d = p.defs
        hi = 12 if p.passes == 8 else 8
        if c.is_mfma:
            if d & (c.srcA | c.srcB): n = max(n, hi)
            if d & c.srcC:
                if not (d == c.srcC and p.passes == c.passes): n = max(n, hi - 2)
            elif d & c.defs: n = max(n, hi)
        elif c.is_valu or c.is_vmem or c.is_ds:
            if d & (c.uses | c.defs): n = max(n, hi)
        if c.is_valu and (p.srcC & c.defs): n = max(n, 7 if p.passes == 8 else 3)
        if (c.is_ds or c.is_vmem) and (p.srcC & c.defs): n = max(n, 7 if p.passes == 8 else 3)
    if p.is_valu:
        dv, ds_ = V(p.defs), S(p.defs)
        if c.is_mfma and dv & c.uses: n = max(n, 3 if p.op.startswith('v_dot') else 2)
        if c.is_mfma and ds_ & regs_of('exec'): n = max(n, 4)
        if c.is_vmem and ds_ & c.uses: n = max(n, 5)
        if c.is_valu:
            if ds_ & c.uses:
                n = max(n, 4 if c.op in ('v_readlane_b32', 'v_writelane_b32') else 2)
            if c.op in ('v_readlane_b32', 'v_readfirstlane_b32') and dv & c.uses: n = max(n, 1)
            if c.op.startswith('v_permlane') and dv & c.uses: n = max(n, 2)
            if c.is_dpp and dv & c.uses: n = max(n, 2)
            if p.is_trans and dv & c.uses: n = max(n, 1)
            if ('op_sel' in p.mods and not p.op.startswith('v_pk') and not p.op.startswith('v_dot')  or 'dst_sel' in p.mods) and dv & (c.uses | c.defs): n = max(n, 1)
            if ds_ & regs_of('exec') and (c.is_dpp): n = max(n, 5)
            if ds_ & regs_of('exec') and (c.op.startswith(('v_readlane', 'v_readfirstlane', 'v_writelane', 'v_permlane'))): n = max(n, 4)
            if p.op.startswith('v_dot') and dv & (c.uses | c.defs):
                same_c = c.op == p.op and not (dv & (regs_of(c.ops[1]) | regs_of(c.ops[2])))
                if not same_c: n = max(n, 3)
        if p.op.startswith('v_dot') and (c.is_vmem or c.is_ds) and dv & c.uses: n = max(n, 3)
        if c.is_salu and ds_ & c.uses: n = max(n, 1)
    if p.is_salu and regs_of('m0') & p.defs and (c.op and (c.is_ldsdma or 'addtid' in c.op)): n = max(n, 1)
    if p.is_vmem and getattr(p, 'store_data', None) and len(p.store_data) >= 3:
        if p.store_data & c.defs: n = max(n, 2 if c.is_valu else 1)
    return n

class Asm:
    def __init__(self):
        self.lines = []
    def __call__(self, s):
        for l in s.split('\n'):
            l = l.strip()
            if l: self.lines.append(l)
    def label(self, n): self.lines.append(n + ':')
    def comment(self, s): self.lines.append('; ' + s)

def fix_hazards(lines, verbose=False):
    total = 0
    while True:
        ins = [Ins(l) for l in lines]
        lab = {x.label: i for i, x in enumerate(ins) if x.label}
        preds = [[] for _ in ins]
        for i, x in enumerate(ins):
            if x.op in ('s_branch',) or (x.op and x.op.startswith('s_cbranch')):
                preds[lab[x.ops[0]]].append(i)
            if i + 1 < len(ins) and x.op not in ('s_branch', 's_endpgm'):
                preds[i+1].append(i)
        inserts = {}
        for i, c in enumerate(ins):
            if c.op is None or c.op in ('s_nop',): continue
            if not (c.is_mfma or c.is_valu or c.is_vmem or c.is_ds or c.is_salu): continue
            worst = 0
            stack = [(j, 0) for j in preds[i]]; seen = {}
            while stack:
                j, dist = stack.pop()
                if dist >= 12 or seen.get(j, 99) <= dist: continue
                seen[j] = dist
                p = ins[j]
                if p.op is not None:
                    r = need(p, c) - dist
                    if r > worst: worst = r; why = p.text
                d2 = dist + p.states() + inserts.get(j, 0)
                for k in preds[j]: stack.append((k, d2))
            if worst > 0:
                inserts[i] = worst
                if verbose: print(f"nop {worst} before [{c.text}] after [{why}]")
        if not inserts: return lines, total
        out = []
        for i, l in enumerate(lines):
            if i in inserts: out.append(f"s_nop {inserts[i]-1}"); total += inserts[i]
            out.append(l)
        lines = out

def kernel_text(name, lines):
    s = f".globl {name}\n.p2align 8\n.type {name},@function\n{name}:\n"
    for l in lines:
        s += (l if l.endswith(':') else '    ' + l) + '\n'
    return s

def kd_text(name, nvgpr, nagpr=0, nsgpr=102):
    acc = (nvgpr + 3)//4*4
    nfv = acc + nagpr if nagpr else nvgpr
    return (f".p2align 6\n.amdhsa_kernel {name}\n  .amdhsa_next_free_vgpr {nfv}\n  .amdhsa_next_free_sgpr {nsgpr}\n"
            f"  .amdhsa_accum_offset {acc}\n  .amdhsa_group_segment_fixed_size 0\n  .amdhsa_kernarg_size 96\n"
            f"  .amdhsa_user_sgpr_count 2\n  .amdhsa_user_sgpr_kernarg_segment_ptr 1\n  .amdhsa_system_sgpr_workgroup_id_x 1\n"
            f"  .amdhsa_float_denorm_mode_32 3\n.end_amdhsa_kernel\n")

def auto_wait(lines):
    out = []
    vm = []; lg = []
    tag = None; saved = []
    def emit_wait(nv, nl):
        nonlocal vm, lg
        parts = []
        if nv is not None:
            nv = min(nv, 63); parts.append(f"vmcnt({nv})"); vm = vm[len(vm)-nv:] if nv else []
        if nl is not None:
            nl = min(nl, 15); parts.append(f"lgkmcnt({nl})"); lg = lg[len(lg)-nl:] if nl else []
        if parts: out.append("s_waitcnt " + " ".join(parts))
    def need_cnt(q, pred):
        last = -1
        for i, e in enumerate(q):
            if pred(e): last = i
        if last < 0: return None
        if any(e[2] for e in q): return 0
        return len(q) - 1 - last
    for l in lines:
        if l.startswith('@'):
            p = l.split()
            if p[0] == '@tag': tag = p[1]
            elif p[0] == '@waitvm': emit_wait(need_cnt(vm, lambda e: e[1] == p[1]), None)
            elif p[0] == '@waitlgkm': emit_wait(None, need_cnt(lg, lambda e: e[1] == p[1]))
            elif p[0] == '@save': saved.append((list(vm), list(lg)))
            elif p[0] == '@restore': vm, lg = saved.pop()
            elif p[0] == '@reset': vm = []; lg = []
            else: raise ValueError(l)
            continue
        x = Ins(l)
        if x.op is None: out.append(l); continue
        if x.op == 's_waitcnt':
            m = re.search(r'vmcnt\((\d+)\)', l)
            if m: n = int(m.group(1)); vm = vm[len(vm)-n:] if n and len(vm) > n else (vm if n else [])
            m = re.search(r'lgkmcnt\((\d+)\)', l)
            if m: n = int(m.group(1)); lg = lg[len(lg)-n:] if n and len(lg) > n else (lg if n else [])
            out.append(l); continue
        touched = x.uses | x.defs
        nv = need_cnt(vm, lambda e: e[0] & touched)
        nl = need_cnt(lg, lambda e: e[0] & touched)
        emit_wait(nv, nl)
        out.append(l)
        if x.is_vmem and not x.op.startswith(('buffer_wbl2', 'buffer_inv')):
            vm.append((set(x.defs), tag, False)); tag = None
        elif x.is_ds:
            lg.append((set(x.defs), tag, False)); tag = None
        elif x.op.startswith(('s_load', 's_buffer_load', 's_memtime', 's_memrealtime')):
            lg.append((set(x.defs), tag, True)); tag = None
    return out

def interleave(main, fill):
    out = []
    n = len(main); m = len(fill); k = 0
    for i, g in enumerate(main):
        out += g if isinstance(g, list) else [g]
        tgt = (i + 1) * m // n
        while k < tgt:
            f = fill[k]; out += f if isinstance(f, list) else [f]; k += 1
    return out

def finish(a, verbose=False):
    l = auto_wait(a.lines)
    l, n = fix_hazards(l, verbose)
    return l
```

```python
WS_MODP = 0x0
WS_MOD  = 0x10000
WS_FLAG = 0x14000
WS_ST2  = 0x20000
WS_UP   = 0x40000
WS_XF   = 0x100000
WS_WQF  = 0x400000
WS_KV   = 0x700000
WS_OF   = 0xD00000
WS_X1F  = 0x1000000
WS_WOF  = 0x1300000
WS_WDF  = 0x1400000
WS_WGF  = 0x1700000
WS_ACTF = 0x1C00000
WS_END  = 0x2400000
SZ_MODP=4*3840*4; SZ_MOD=3840*4; SZ_FLAG=256*128; SZ_ST2=2048*64; SZ_UP=8*108*256
SZ_ACT16=2048*640*2; SZ_WQF=32*81920; SZ_KV=256*24576; SZ_WOF=640*640*2; SZ_WDF=1728*640*2; SZ_WGF=108*40*1024; SZ_ACTF=2048*1728*2
```

```python
import sys
sys.path.insert(0, 'tools')
from asmgen import *
from layout import *

LOG2E = 0x3fb8aa3b
ONES_BF = 0x3f803f80
def f2u(x):
    import struct
    return struct.unpack('<I', struct.pack('<f', x))[0]

P = dict(x=16, wqkv=18, wo=20, wg=24, wu=26, wd=28, c=30, wmod=32, out=34, dbg=36, ws=38)
def load_args(a):
    a("s_load_dwordx16 s[16:31], s[0:1], 0")
    a("s_load_dwordx8 s[32:39], s[0:1], 64")
def srd(a, d, ptr, off, size):
    p = P[ptr]
    if off:
        a(f"s_add_u32 {d[0]}, s{p}, {off:#x}")
        a(f"s_addc_u32 {d[1]}, s{p+1}, 0")
    else:
        a(f"s_mov_b32 {d[0]}, s{p}")
        a(f"s_mov_b32 {d[1]}, s{p+1}")
    a(f"s_mov_b32 {d[2]}, {size:#x}")
    a(f"s_mov_b32 {d[3]}, 0x20000")

def nib(vals):
    r = 0
    for i, v in enumerate(vals): r |= v << (4*i)
    return r

def role_mod(a, sid):
    S = Alloc('s', 40, 100); V = Alloc('v', 1, 128)
    rw, rc, rp = S(4), S(4), S(4)
    ks, cg, t0, t1 = S(), S(), S(), S()
    a(f"s_mul_hi_u32 {ks}, {sid}, {(2**32+59)//60:#x}")
    a(f"s_mul_i32 {t0}, {ks}, 60")
    a(f"s_sub_u32 {cg}, {sid}, {t0}")
    vrow, voff, vc = V(), V(), V()
    a(f"s_mul_i32 {t0}, {ks}, 160")
    a(f"v_lshrrev_b32 {vrow}, 3, v0")
    a(f"v_add_u32 {vrow}, {t0}, {vrow}")
    a(f"v_mul_u32_u24 {voff}, 7680, {vrow}")
    a(f"v_and_b32 {vc}, 7, v0")
    a(f"v_lshl_add_u32 {voff}, {vc}, 4, {voff}")
    a(f"s_lshl_b32 {t1}, {cg}, 7")
    a(f"v_add_u32 {voff}, {t1}, {voff}")
    a(f"v_lshlrev_b32 {vrow}, 1, {vrow}")
    a("s_waitcnt lgkmcnt(0)")
    srd(a, rw, 'wmod', 0, 640*3840*2); srd(a, rc, 'c', 0, 1280)
    w = [V(4) for _ in range(5)]; c = [V() for _ in range(5)]
    for i in range(5): a(f"buffer_load_ushort {c[i]}, {vrow}, {rc}, 0 offen offset:{64*i}")
    for i in range(5):
        a(f"s_mov_b32 {t0}, {32*7680*i}")
        a(f"buffer_load_dwordx4 {w[i]}, {voff}, {rw}, {t0} offen")
    srd(a, rp, 'ws', WS_MODP, SZ_MODP)
    ylo = [V() for _ in range(5)]; yhi = [V() for _ in range(5)]
    a(f"s_mov_b32 {t1}, {LOG2E | 0x80000000:#x}")
    for i in range(5): a(f"v_lshlrev_b32 {c[i]}, 16, {c[i]}")
    for i in range(5): a(f"v_mul_f32 {ylo[i]}, {t1}, {c[i]}")
    for i in range(5): a(f"v_exp_f32 {ylo[i]}, {ylo[i]}")
    for i in range(5): a(f"v_add_f32 {ylo[i]}, 1.0, {ylo[i]}")
    for i in range(5): a(f"v_rcp_f32 {ylo[i]}, {ylo[i]}")
    for i in range(5): a(f"v_mul_f32 {ylo[i]}, {c[i]}, {ylo[i]}")
    for i in range(5): a(f"v_cvt_pk_bf16_f32 {ylo[i]}, {ylo[i]}, 0")
    for i in range(5): a(f"v_lshlrev_b32 {yhi[i]}, 16, {ylo[i]}")
    acc = V(8)
    for i in range(5):
        for j in range(8):
            y = (ylo, yhi)[j & 1][i]
            a(f"v_dot2_f32_bf16 {acc[j]}, {w[i][j>>1]}, {y}, {acc[j] if i else 0}")
    for j in range(4): a(f"v_permlane32_swap_b32 {acc[j]}, {acc[j+4]}")
    for j in range(4): a(f"v_add_f32 {acc[j]}, {acc[j]}, {acc[j+4]}")
    for j in range(2): a(f"v_permlane16_swap_b32 {acc[j]}, {acc[j+2]}")
    for j in range(2): a(f"v_add_f32 {acc[j]}, {acc[j]}, {acc[j+2]}")
    for j in range(2): a(f"v_add_f32 {acc[j]}, {acc[j]}, {acc[j]} row_ror:8 row_mask:0xf bank_mask:0xf")
    t = V(); u = V()
    a(f"v_lshlrev_b32 {t}, 5, {vc}")
    a(f"v_bfe_u32 {u}, v0, 4, 2")
    a(f"v_lshl_add_u32 {t}, {u}, 3, {t}")
    a(f"v_lshrrev_b32 {u}, 6, v0")
    a(f"v_lshl_add_u32 {t}, {u}, 8, {t}")
    a(f"ds_write_b64 {t}, {acc[0:2]}")
    a("s_waitcnt lgkmcnt(0)\ns_barrier")
    a(f"v_and_b32 {t}, 63, v0\nv_lshlrev_b32 {t}, 2, {t}")
    for i in range(4): a(f"ds_read_b32 {acc[i]}, {t} offset:{256*i}")
    a(f"s_mul_i32 {t0}, {ks}, {3840*4}")
    a(f"s_lshl_b32 {t1}, {cg}, 8")
    a(f"s_add_u32 {t0}, {t0}, {t1}")
    a(f"v_add_f32 {acc[0]}, {acc[0]}, {acc[1]}\nv_add_f32 {acc[2]}, {acc[2]}, {acc[3]}\nv_add_f32 {acc[0]}, {acc[0]}, {acc[2]}")
    a(f"buffer_store_dword {acc[0]}, {t}, {rp}, {t0} offen")
    a("s_endpgm")
    return V.hi

def role_xn(a, sid):
    S = Alloc('s', 40, 100); V = Alloc('v', 1, 128)
    rx, rf, rfl = S(4), S(4), S(4)
    t0, t1 = S(), S()
    vrow, vc, voff, vo2 = V(), V(), V(), V()
    a(f"v_lshrrev_b32 {vrow}, 6, v0\nv_and_b32 {vc}, 3, v0\nv_lshl_add_u32 {vrow}, {vrow}, 2, {vc}")
    a(f"s_lshl_b32 {t0}, {sid}, 4\nv_add_u32 {vrow}, {t0}, {vrow}")
    a(f"v_bfe_u32 {vc}, v0, 2, 4")
    a(f"v_mul_u32_u24 {voff}, 1280, {vrow}\nv_lshl_add_u32 {voff}, {vc}, 4, {voff}")
    a("s_waitcnt lgkmcnt(0)")
    srd(a, rx, 'x', 0, SZ_ACT16)
    w = [V(4) for _ in range(5)]
    for i in range(5): a(f"buffer_load_dwordx4 {w[i]}, {voff}, {rx}, 0 offen offset:{256*i}")
    srd(a, rf, 'ws', WS_XF, SZ_ACT16); srd(a, rfl, 'ws', WS_FLAG, SZ_FLAG)
    z = V()
    a(f"v_mov_b32 {z}, 0\nv_and_b32 {vo2}, 63, v0\nv_lshlrev_b32 {vo2}, 2, {vo2}\ns_lshl_b32 {t1}, {sid}, 8")
    a(f"buffer_store_dword {z}, {vo2}, {rfl}, {t1} offen")
    a(f"v_lshrrev_b32 {vo2}, 5, {vrow}\nv_mul_u32_u24 {vo2}, 40960, {vo2}\nv_lshl_add_u32 {vo2}, {vc}, 9, {vo2}")
    a(f"v_and_b32 {vrow}, 31, {vrow}\nv_lshl_add_u32 {vo2}, {vrow}, 4, {vo2}")
    f = V(40); sm = V(2); tmp = V(2); one = V()
    a(f"v_mov_b32 {one}, {ONES_BF:#x}")
    def allreduce(x, t):
        a(f"v_add_f32 {x}, {x}, {x} row_ror:4 row_mask:0xf bank_mask:0xf")
        a(f"v_add_f32 {x}, {x}, {x} row_ror:8 row_mask:0xf bank_mask:0xf")
        a(f"v_mov_b32 {t}, {x}\nv_permlane16_swap_b32 {x}, {t}\nv_add_f32 {x}, {x}, {t}")
        a(f"v_mov_b32 {t}, {x}\nv_permlane32_swap_b32 {x}, {t}\nv_add_f32 {x}, {x}, {t}")
    for i in range(5):
        for j in range(4):
            a(f"v_dot2_f32_bf16 {sm[j&1]}, {w[i][j]}, {one}, {sm[j&1] if (i or j>1) else 0}")
            a(f"v_lshlrev_b32 {f[8*i+2*j]}, 16, {w[i][j]}")
            a(f"v_and_b32 {f[8*i+2*j+1]}, 0xffff0000, {w[i][j]}")
    a(f"v_add_f32 {sm[0]}, {sm[0]}, {sm[1]}")
    allreduce(sm[0], tmp[0])
    a(f"v_mul_f32 {sm[0]}, {f2u(-1.0/640):#x}, {sm[0]}")
    for j in range(20): a(f"v_pk_add_f32 {f[2*j:2*j+2]}, {f[2*j:2*j+2]}, {sm} op_sel_hi:[1,0]")
    for j in range(20):
        if j == 0: a(f"v_pk_mul_f32 {tmp}, {f[0:2]}, {f[0:2]}")
        else: a(f"v_pk_fma_f32 {tmp}, {f[2*j:2*j+2]}, {f[2*j:2*j+2]}, {tmp}")
    a(f"v_add_f32 {sm[0]}, {tmp[0]}, {tmp[1]}")
    allreduce(sm[0], tmp[0])
    a(f"v_mov_b32 {tmp[0]}, {f2u(1e-5):#x}")
    a(f"v_fmac_f32 {tmp[0]}, {f2u(1.0/640):#x}, {sm[0]}")
    a(f"v_rsq_f32 {sm[0]}, {tmp[0]}")
    for j in range(20): a(f"v_pk_mul_f32 {f[2*j:2*j+2]}, {f[2*j:2*j+2]}, {sm} op_sel_hi:[1,0]")
    for i in range(5):
        for j in range(4): a(f"v_cvt_pk_bf16_f32 {w[i][j]}, {f[8*i+2*j]}, {f[8*i+2*j+1]}")
        a(f"s_mov_b32 {t0}, {8192*i}")
        a(f"buffer_store_dwordx4 {w[i]}, {vo2}, {rf}, {t0} offen")
    a("s_endpgm")
    return V.hi

QUADS = None
def wq_quads(par):
    base, tail = (0, 4) if par == 0 else (1, 0)
    q = [(0, i) for i in range(5)] + [(2, tail)] + [(1, i) for i in range(5)] + [(1, 4)]
    q += [(2, base), (2, base+2), (2, base+1), (2, base+3)]
    return q
def role_wq(a, sid):
    S = Alloc('s', 40, 100); V = Alloc('v', 1, 128)
    rw, rf = S(4), S(4)
    ks, hg, wv, t0, t1 = S(), S(), S(), S(), S()
    lane, t, u = V(), V(), V()
    a(f"s_lshr_b32 {ks}, {sid}, 2\ns_and_b32 {hg}, {sid}, 3")
    a(f"v_lshrrev_b32 {t}, 6, v0\nv_and_b32 {lane}, 63, v0\nv_readfirstlane_b32 {wv}, {t}")
    off = [V() for _ in range(5)]
    for i in range(5):
        a(f"v_add_u32 {t}, {64*i}, {lane}")
        a(f"v_mul_u32_u24 {u}, 3277, {t}\nv_lshrrev_b32 {u}, 16, {u}")
        a(f"v_mul_u32_u24 {off[i]}, {3840-320}, {u}\nv_lshl_add_u32 {off[i]}, {t}, 4, {off[i]}")
    a(f"s_mul_i32 {t0}, {ks}, {16*3840}\ns_mul_i32 {t1}, {wv}, 1280\ns_add_u32 {t0}, {t0}, {t1}\ns_mul_i32 {t1}, {hg}, 320\ns_add_u32 {t0}, {t0}, {t1}")
    a("s_waitcnt lgkmcnt(0)")
    srd(a, rw, 'wqkv', 0, 640*1920*2); srd(a, rf, 'ws', WS_WQF, SZ_WQF)
    a(f"s_cmp_eq_u32 {wv}, 3\ns_cbranch_scc1 Lwq_noload")
    a(f"s_mul_i32 {t1}, {wv}, 5120")
    for i in range(5):
        a(f"s_add_u32 m0, {t1}, {1024*i}")
        a(f"buffer_load_dwordx4 {off[i]}, {rw}, {t0} offen lds")
    a("Lwq_noload:")
    q, kr = V(), V()
    a(f"v_bfe_u32 {q}, {lane}, 4, 1\nv_and_b32 {t}, 3, {lane}\nv_lshl_add_u32 {q}, {q}, 2, {t}\nv_lshlrev_b32 {q}, 2, {q}")
    a(f"v_lshrrev_b32 {kr}, 5, {lane}\nv_bfe_u32 {t}, {lane}, 2, 2\nv_lshl_add_u32 {kr}, {kr}, 3, {t}\nv_mul_u32_u24 {kr}, 320, {kr}")
    a(f"s_mul_i32 {t1}, {wv}, 80\nv_add_u32 {kr}, {t1}, {kr}")
    ad = {}
    for par in range(2):
        Q = wq_quads(par)
        for tl in range(2):
            r = V(); ad[par, tl] = r
            a(f"s_mov_b32 {t1}, {nib([x[0] for x in Q[8*tl:8*tl+8]]):#x}\nv_bfe_u32 {t}, {t1}, {q}, 4")
            a(f"s_mov_b32 {t1}, {nib([x[1] for x in Q[8*tl:8*tl+8]]):#x}\nv_bfe_u32 {u}, {t1}, {q}, 4")
            a(f"v_mul_u32_u24 {t}, 5120, {t}\nv_lshl_add_u32 {t}, {u}, 3, {t}\nv_add_u32 {r}, {t}, {kr}")
    vo = V()
    a(f"v_lshlrev_b32 {vo}, 4, {lane}")
    a(f"s_lshl_b32 {t0}, {hg}, 2\ns_add_u32 {t0}, {t0}, {wv}\ns_mul_i32 {t0}, {t0}, {2*81920}\ns_lshl_b32 {t1}, {ks}, 11\ns_add_u32 {t0}, {t0}, {t1}")
    a(f"s_add_u32 {t1}, {t0}, 81920")
    a("s_waitcnt vmcnt(0)\ns_barrier")
    fr = {}
    for par in range(2):
        for tl in range(2):
            f = V(4); fr[par, tl] = f
            for uu in range(2): a(f"ds_read_b64_tr_b16 {f[2*uu:2*uu+2]}, {ad[par,tl]} offset:{par*40 + uu*1280}")
    for par in range(2):
        for tl in range(2):
            a(f"buffer_store_dwordx4 {fr[par,tl]}, {vo}, {rf}, {(t0,t1)[par]} offen offset:{1024*tl}")
    a("s_endpgm")
    return V.hi

def role_wn(a, sid):
    S = Alloc('s', 40, 100); V = Alloc('v', 1, 128)
    rw, rf = S(4), S(4)
    ks, hf, wv, t0, t1, nk = S(), S(), S(), S(), S(), S()
    lane, t, u = V(), V(), V()
    a(f"s_lshr_b32 {ks}, {sid}, 1\ns_and_b32 {hf}, {sid}, 1")
    a(f"v_lshrrev_b32 {t}, 6, v0\nv_and_b32 {lane}, 63, v0\nv_readfirstlane_b32 {wv}, {t}")
    off = [V() for _ in range(5)]
    for i in range(5):
        a(f"v_add_u32 {t}, {64*i}, {lane}")
        a(f"v_mul_u32_u24 {u}, 1639, {t}\nv_lshrrev_b32 {u}, 16, {u}")
        a(f"v_mul_u32_u24 {off[i]}, {1280-640}, {u}\nv_lshl_add_u32 {off[i]}, {t}, 4, {off[i]}")
    a("s_waitcnt lgkmcnt(0)")
    a(f"s_cmp_lt_u32 {ks}, 20\ns_cbranch_scc0 Lwn_wd")
    srd(a, rw, 'wo', 0, SZ_WOF); srd(a, rf, 'ws', WS_WOF, SZ_WOF); a(f"s_mov_b32 {nk}, 20\ns_branch Lwn_go")
    a("Lwn_wd:")
    srd(a, rw, 'wd', 0, SZ_WDF); srd(a, rf, 'ws', WS_WDF, SZ_WDF); a(f"s_mov_b32 {nk}, 54\ns_sub_u32 {ks}, {ks}, 20")
    a("Lwn_go:")
    a(f"s_lshl_b32 {t0}, {ks}, 2\ns_add_u32 {t0}, {t0}, {wv}\ns_mul_i32 {t0}, {t0}, {8*1280}\ns_mul_i32 {t1}, {hf}, 640\ns_add_u32 {t0}, {t0}, {t1}")
    a(f"s_mul_i32 {t1}, {wv}, 5120")
    for i in range(5):
        a(f"s_add_u32 m0, {t1}, {1024*i}")
        a(f"buffer_load_dwordx4 {off[i]}, {rw}, {t0} offen lds")
    a0, a1, kr = V(), V(), V()
    a(f"v_lshrrev_b32 {kr}, 4, {lane}\nv_bfe_u32 {t}, {lane}, 2, 2\nv_lshl_add_u32 {kr}, {kr}, 3, {t}\nv_mul_u32_u24 {kr}, 640, {kr}")
    a(f"s_mul_i32 {t1}, {wv}, 160\nv_add_u32 {kr}, {t1}, {kr}\nv_and_b32 {t}, 3, {lane}")
    a(f"v_lshl_add_u32 {a0}, {t}, 4, {kr}\nv_lshl_add_u32 {a1}, {t}, 3, {kr}")
    vo = V()
    a(f"v_lshlrev_b32 {vo}, 4, {lane}")
    a(f"s_lshl_b32 {t0}, {hf}, 2\ns_add_u32 {t0}, {t0}, {wv}\ns_mul_i32 {t0}, {t0}, {nk}\ns_add_u32 {t0}, {t0}, {ks}\ns_mul_i32 {t0}, {t0}, 5120")
    a(f"s_add_u32 {t1}, {t0}, 4096")
    a("s_waitcnt vmcnt(0)\ns_barrier")
    fr = [V(4) for _ in range(5)]
    for tl in range(5):
        for uu in range(2):
            o = (64*(tl >> 1) + 8*(tl & 1) if tl < 4 else 128) + uu*4*640
            a(f"ds_read_b64_tr_b16 {fr[tl][2*uu:2*uu+2]}, {a0 if tl<4 else a1} offset:{o}")
    for tl in range(5):
        a(f"buffer_store_dwordx4 {fr[tl]}, {vo}, {rf}, {t0 if tl<4 else t1} offen offset:{1024*(tl&3)}")
    a("s_endpgm")
    return V.hi


def modvec_load(a, V, rmp, voff, st, col_scale, col_shift):
    r = [[V(2) for _ in range(4)] for _ in range(2)]
    for vi, col in enumerate((col_scale, col_shift)):
        for p in range(4):
            a(f"s_mov_b32 {st}, {p*15360 + col*4}")
            a(f"buffer_load_dwordx2 {r[vi][p]}, {voff}, {rmp}, {st} offen")
    return r
def modvec_finish(a, r, vaddr, ldsoff):
    for vi in range(2):
        x = r[vi]
        a(f"v_pk_add_f32 {x[0]}, {x[0]}, {x[1]}\nv_pk_add_f32 {x[2]}, {x[2]}, {x[3]}\nv_pk_add_f32 {x[0]}, {x[0]}, {x[2]}")
        a(f"v_cvt_pk_bf16_f32 {x[0][0]}, {x[0][0]}, {x[0][1]}")
        if vi == 0:
            a(f"v_and_b32 {x[0][1]}, 0xffff0000, {x[0][0]}\nv_lshlrev_b32 {x[0][0]}, 16, {x[0][0]}")
            a(f"v_add_f32 {x[0][0]}, 1.0, {x[0][0]}\nv_add_f32 {x[0][1]}, 1.0, {x[0][1]}")
            a(f"v_cvt_pk_bf16_f32 {x[0][0]}, {x[0][0]}, {x[0][1]}")
        a(f"ds_write_b32 {vaddr}, {x[0][0]} offset:{ldsoff + 256*vi}")
def scale_ops(frags, baccs, first, sp, sap, msk, tmp, csum=None, one=None):
    o = []
    for i in range(4):
        o.append(f"v_and_b32 {msk[2*i]}, 0xffff, {sp[i]}")
        o.append(f"v_and_b32 {msk[2*i+1]}, 0xffff0000, {sp[i]}")
    for fi, f in enumerate(frags):
        for i in range(4):
            o.append(f"v_dot2_f32_bf16 {tmp[2*i]}, {f[i]}, {msk[2*i]}, 0")
            o.append(f"v_dot2_f32_bf16 {tmp[2*i+1]}, {f[i]}, {msk[2*i+1]}, 0")
        for i in range(4):
            o.append(f"v_dot2_f32_bf16 {baccs[fi]}, {f[i]}, {sap[i]}, {0 if (first and i == 0) else baccs[fi]}")
        for i in range(4):
            o.append(f"v_cvt_pk_bf16_f32 {f[i]}, {tmp[2*i]}, {tmp[2*i+1]}")
        if csum is not None:
            for i in range(4):
                o.append(f"v_dot2_f32_bf16 {csum[fi]}, {f[i]}, {one}, {0 if (first and i == 0) else csum[fi]}")
    return o

NEG = f2u(-1e30)
QSCALE = f2u(20**-0.5 * 1.4426950408889634)
L_WP, L_KV, L_MV, L_BP, L_BF, L_K1END = 0, 81920, 131072, 135168, 137216, 139264
def gen_k1():
    a = Asm()
    S = Alloc('s', 40, 100); V = Alloc('v', 1, 256)
    load_args(a)
    a("s_cmp_ge_u32 s2, 256\ns_cbranch_scc1 Lk1_end")
    rmp, rwq, rxf, rkv, rfl, rof, rmod = S(4), S(4), S(4), S(4), S(4), S(4), S(4)
    blk, head, wv, st, st2, sxo, swo, hm = S(), S(), S(), S(), S(), S(), S(), S(2)
    lane, l16, t, u, vmv, vmr = V(), V(), V(), V(), V(), V()
    a(f"s_bfe_u32 {blk}, s2, 0x20001\ns_lshl_b32 {blk}, {blk}, 1\ns_lshr_b32 {st}, s2, 7\ns_add_u32 {blk}, {blk}, {st}")
    a(f"s_and_b32 {head}, s2, 1\ns_lshl_b32 {head}, {head}, 4\ns_bfe_u32 {st}, s2, 0x40003\ns_add_u32 {head}, {head}, {st}")
    a(f"v_lshrrev_b32 {t}, 6, v0\nv_and_b32 {lane}, 63, v0\nv_readfirstlane_b32 {wv}, {t}")
    a(f"v_lshlrev_b32 {l16}, 4, {lane}")
    vmo = V()
    a(f"v_lshrrev_b32 {u}, 3, {lane}\nv_lshlrev_b32 {vmo}, 9, {u}\nv_and_b32 {u}, 7, {lane}\nv_lshl_add_u32 {vmo}, {u}, 3, {vmo}\nv_lshl_add_u32 {vmo}, {t}, 6, {vmo}")
    a(f"v_lshlrev_b32 {vmv}, 9, {t}\nv_lshrrev_b32 {u}, 5, {lane}\nv_lshl_add_u32 {vmr}, {u}, 4, {vmv}\nv_lshl_add_u32 {vmv}, {lane}, 2, {vmv}")
    a(f"v_add_u32 {vmr}, {L_MV}, {vmr}\nv_add_u32 {vmv}, {L_MV}, {vmv}")
    a(f"s_mov_b32 {hm[0]}, 0\ns_mov_b32 {hm[1]}, -1")
    a(f"s_lshl_b32 {sxo}, {blk}, 3\ns_add_u32 {sxo}, {sxo}, {wv}\ns_mul_i32 {sxo}, {sxo}, 40960")
    a(f"s_mul_i32 {swo}, {head}, 81920\ns_lshl_b32 {st}, {wv}, 11\ns_add_u32 {swo}, {swo}, {st}")
    a("s_waitcnt lgkmcnt(0)")
    srd(a, rmp, 'ws', WS_MODP, SZ_MODP); srd(a, rwq, 'ws', WS_WQF, SZ_WQF); srd(a, rxf, 'ws', WS_XF, SZ_ACT16)
    X = [V(32) for _ in range(3)]
    raw = [V(8) for _ in range(2)]
    acc = V(32); wp = [V(8) for _ in range(2)]
    sp, sap, msk, tmp, bacc = V(4), V(4), V(8), V(8), V(2)
    mp = modvec_load(a, V, rmp, vmo, st, 640, 0)
    def ld_w(r):
        return [[f"s_add_u32 {st2}, {swo}, {r*16384}", f"buffer_load_dwordx4 {raw[r&1][0:4]}, {l16}, {rwq}, {st2} offen"],
                [f"buffer_load_dwordx4 {raw[r&1][4:8]}, {l16}, {rwq}, {st2} offen offset:1024"]]
    def ld_x(r):
        o = []
        for s_ in range(8):
            g = []
            if s_ % 4 == 0: g.append(f"s_add_u32 {st2}, {sxo}, {(8*r+s_)*1024}")
            g.append(f"buffer_load_dwordx4 {X[r%3][4*s_:4*s_+4]}, {l16}, {rxf}, {st2} offen offset:{(s_%4)*1024}")
            o.append(g)
        return o
    for g in ld_w(0) + ld_x(0) + ld_w(1): a('\n'.join(g))
    srd(a, rkv, 'ws', WS_KV, SZ_KV); srd(a, rfl, 'ws', WS_FLAG, SZ_FLAG); srd(a, rof, 'ws', WS_OF, SZ_ACT16); srd(a, rmod, 'ws', WS_MOD, SZ_MOD)
    modvec_finish(a, mp, vmv, 0)
    for x in mp: V.release(*x)
    V.release(vmo)
    vww = V()
    a(f"v_lshl_add_u32 {vww}, {t}, 11, {l16}")
    vw2 = V()
    a(f"v_add_u32 {vw2}, 65536, {l16}")
    def scale_round(r):
        o = [f"ds_read_b128 {sp}, {vmr} offset:{32*r}", f"ds_read_b128 {sap}, {vmr} offset:{256 + 32*r}"]
        o += scale_ops([raw[r&1][0:4], raw[r&1][4:8]], [bacc[0], bacc[1]], r == 0, sp, sap, msk, tmp)
        if r < 4:
            o += [f"ds_write_b128 {vww}, {raw[r&1][0:4]} offset:{r*16384}", f"ds_write_b128 {vww}, {raw[r&1][4:8]} offset:{r*16384+1024}"]
        else:
            o += [f"v_add_u32 {vww}, 65536, {vww}", f"ds_write_b128 {vww}, {raw[r&1][0:4]}", f"ds_write_b128 {vww}, {raw[r&1][4:8]} offset:1024"]
        return o
    for l in interleave([[x] for x in scale_round(0)], ld_x(1)): a(l)
    def rd_w(ks):
        base, off = (l16, ks*2048) if ks < 32 else (vw2, (ks-32)*2048)
        return [f"ds_read_b128 {wp[ks&1][0:4]}, {base} offset:{off}", f"ds_read_b128 {wp[ks&1][4:8]}, {base} offset:{off+1024}"]
    bias = X[0]
    vbp, vbf = V(), V()
    for r in range(5):
        a("s_waitcnt lgkmcnt(0)\ns_barrier")
        a('\n'.join(rd_w(8*r)))
        main = []
        for s_ in range(8):
            ks = 8*r + s_
            g = rd_w(ks+1) if s_ < 7 else []
            for tl in range(2):
                c = acc[16*tl:16*tl+16]
                m = f"v_mfma_f32_32x32x16_bf16 {c}, {wp[ks&1][4*tl:4*tl+4]}, {X[r%3][4*s_:4*s_+4]}, {c if ks else 0}"
                main.append(g + [m] if tl == 0 else [m])
        fill = []
        if r < 3:
            fill = interleave([[x] for x in scale_round(r+1)], ld_x(r+2)[:0])
            lds_ = ld_w(r+2) + ld_x(r+2)
            fill = [[x] for x in fill]
            fill = interleave_items(fill, lds_)
        elif r == 3:
            fill = [[x] for x in scale_round(4)]
            fill += [[f"v_permlane32_swap_b32 {bacc[0]}, {bacc[1]}"], [f"v_add_f32 {bacc[0]}, {bacc[0]}, {bacc[1]}"],
                     [f"v_lshlrev_b32 {vbp}, 2, v0"], [f"v_add_u32 {vbp}, {L_BP}, {vbp}"], [f"ds_write_b32 {vbp}, {bacc[0]}"]]
        else:
            fill = [[f"v_lshlrev_b32 {vbf}, 2, {lane}"], [f"v_add_u32 {vbf}, {L_BP}, {vbf}"]]
            fill += [[f"ds_read_b32 {tmp[i]}, {vbf} offset:{256*i}"] for i in range(8)]
            fill += [[f"v_add_f32 {tmp[i]}, {tmp[i]}, {tmp[i+4]}"] for i in range(4)]
            fill += [[f"v_add_f32 {tmp[i]}, {tmp[i]}, {tmp[i+2]}"] for i in range(2)]
            fill += [[f"v_add_f32 {tmp[0]}, {tmp[0]}, {tmp[1]}"], [f"ds_write_b32 {vbp}, {tmp[0]} offset:{L_BF-L_BP}"]]
            fill += [[f"v_lshrrev_b32 {vbf}, 5, {lane}"], [f"v_lshlrev_b32 {vbf}, 4, {vbf}"], [f"v_lshl_add_u32 {vbf}, {t}, 8, {vbf}"], [f"v_add_u32 {vbf}, {L_BF}, {vbf}"]]
            fill += [[f"ds_read_b128 {bias[4*G:4*G+4]}, {vbf} offset:{32*G}"] for G in range(8)]
        for l in interleave(main, fill): a(l)
    V.release(*wp, *raw, sp, sap, msk, tmp, bacc, vww, vw2, vbp, vbf, vmv, vmr, X[1], X[2])
    Pk = V(16); Q1 = V(2); K1 = V(2); Vt = V(2); cq = V(2); cq2 = V(2); c1 = V()
    vk0, vk1, vv0, vv1 = V(), V(), V(), V()
    a(f"s_mul_i32 {st}, {wv}, 3072\ns_add_u32 {st}, {st}, {L_KV}")
    a(f"v_add_u32 {vk0}, {st}, {l16}")
    a(f"v_lshl_add_u32 {vk1}, {lane}, 3, {st}")
    a(f"v_and_b32 {u}, 31, {lane}\nv_mul_u32_u24 {vv0}, 48, {u}\nv_add_u32 {vv0}, {st}, {vv0}\nv_lshrrev_b32 {u}, 5, {lane}")
    a(f"v_lshlrev_b32 {vv1}, 3, {u}\nv_sub_u32 {vv1}, {vv0}, {vv1}\nv_lshl_add_u32 {vv0}, {u}, 4, {vv0}")
    a(f"v_mov_b32 {cq[0]}, {QSCALE:#x}\nv_cndmask_b32 {cq2[0]}, {cq[0]}, 1.0, {hm}\nv_mov_b32 {c1}, 0x3f80")
    for j in range(16): a(f"v_pk_add_f32 {acc[2*j:2*j+2]}, {acc[2*j:2*j+2]}, {bias[2*j:2*j+2]}")
    for j in range(6): a(f"v_pk_mul_f32 {acc[2*j:2*j+2]}, {acc[2*j:2*j+2]}, {cq if j<4 else cq2} op_sel_hi:[1,0]")
    for j in list(range(6, 16)) + list(range(6)): a(f"v_cvt_pk_bf16_f32 {Pk[j]}, {acc[2*j]}, {acc[2*j+1]}")
    OWN = 8*3072
    a(f"ds_write_b128 {vk0}, {Pk[6:10]} offset:{OWN}")
    a(f"ds_write_b128 {vv0}, {Pk[12:16]} offset:{OWN+1536}")
    a(f"v_cndmask_b32 {K1[0]}, {Pk[10]}, 0, {hm}\nv_cndmask_b32 {K1[1]}, {Pk[11]}, 0, {hm}")
    a(f"v_cndmask_b32 {Vt[0]}, {c1}, {Pk[4]}, {hm}\nv_cndmask_b32 {Vt[1]}, 0, {Pk[5]}, {hm}")
    a(f"ds_write_b64 {vk1}, {K1} offset:{OWN+1024}")
    a(f"ds_write_b64 {vv1}, {Vt} offset:{OWN+1536+40}")
    a(f"v_cndmask_b32 {Q1[0]}, {Pk[4]}, {c1}, {hm}\nv_cndmask_b32 {Q1[1]}, {Pk[5]}, 0, {hm}")
    Q0 = Pk[0:4]
    pub = bias[0:12]
    for i in range(3): a(f"ds_read_b128 {pub[4*i:4*i+4]}, {vk0} offset:{OWN+1024*i}")
    sid, skv, sfl = S(), S(), S()
    a(f"s_lshl_b32 {sid}, {blk}, 5\ns_add_u32 {sid}, {sid}, {head}")
    a(f"s_lshl_b32 {skv}, {sid}, 3\ns_add_u32 {skv}, {skv}, {wv}\ns_mul_i32 {skv}, {skv}, 3072")
    a(f"s_lshl_b32 {sfl}, {sid}, 7\ns_lshl_b32 {st2}, {wv}, 2\ns_add_u32 {sfl}, {sfl}, {st2}")
    for i in range(3): a(f"buffer_store_dwordx4 {pub[4*i:4*i+4]}, {l16}, {rkv}, {skv} offen offset:{1024*i} sc1")
    V.release(acc, K1, Vt, cq, cq2, vv0, vv1)
    Sx = [V(16) for _ in range(9)]
    cm = S(2); vneg = V()
    a(f"v_and_b32 {t}, 31, {lane}\nv_lshrrev_b32 {u}, 5, {lane}\nv_lshlrev_b32 {u}, 2, {u}\nv_sub_u32 {t}, {t}, {u}\nv_mov_b32 {vneg}, {NEG:#x}")
    for r in range(16):
        cr = (r & 3) + 8*(r >> 2)
        a(f"v_cmp_gt_i32 {cm}, {cr}, {t}")
        a(f"v_cndmask_b32 {Sx[0][r]}, {vneg}, 0, {cm}\nv_cndmask_b32 {Sx[8][r]}, 0, {vneg}, {cm}")
    z = V(); one = V()
    a(f"v_mov_b32 {z}, 0\nv_mov_b32 {one}, 1")
    a("s_waitcnt vmcnt(0)")
    a(f"buffer_store_dword {one}, {z}, {rfl}, {sfl} offen sc1")
    a("s_cmp_lt_u32 s2, 8\ns_cbranch_scc0 Lk1_nomod\n@save")
    a(f"s_lshl_b32 {st}, s2, 11\nv_lshl_add_u32 {u}, v0, 2, {st}")
    for p in range(4):
        a(f"s_mov_b32 {st}, {p*15360}\nbuffer_load_dword {pub[p]}, {u}, {rmp}, {st} offen")
    a(f"v_add_f32 {pub[0]}, {pub[0]}, {pub[1]}\nv_add_f32 {pub[2]}, {pub[2]}, {pub[3]}\nv_add_f32 {pub[0]}, {pub[0]}, {pub[2]}")
    a(f"v_cvt_pk_bf16_f32 {pub[0]}, 0, {pub[0]}")
    a(f"buffer_store_dword {pub[0]}, {u}, {rmod}, 0 offen\ns_waitcnt vmcnt(0)\n@restore")
    a("Lk1_nomod:")
    a(f"s_cmp_eq_u32 {blk}, 0\ns_cbranch_scc1 Lk1_first")
    a(f"s_sub_u32 {skv}, {skv}, {32*8*3072}\ns_sub_u32 {sfl}, {sfl}, {32*128}\ns_mov_b32 {st2}, 0")
    a("Lk1_poll:")
    a(f"buffer_load_dword {one}, {z}, {rfl}, {sfl} offen sc1\ns_waitcnt vmcnt(0)\nv_readfirstlane_b32 {st}, {one}")
    a(f"s_add_u32 {st2}, {st2}, 1\ns_cmp_gt_u32 {st2}, 0x40000\ns_cbranch_scc1 Lk1_got")
    a(f"s_cmp_eq_u32 {st}, 1\ns_cbranch_scc0 Lk1_poll")
    a("Lk1_got:")
    for i in range(3): a(f"buffer_load_dwordx4 {pub[4*i:4*i+4]}, {l16}, {rkv}, {skv} offen offset:{1024*i} sc1")
    a("s_waitcnt vmcnt(0)\ns_branch Lk1_wr")
    a("Lk1_first:")
    for i in range(12): a(f"v_mov_b32 {pub[i]}, 0")
    a(f"s_mov_b32 {cm[0]}, 0xffff0000\ns_mov_b32 {cm[1]}, 0\nv_mov_b32 {u}, {NEG>>16:#x}")
    a(f"v_cndmask_b32 {pub[4]}, 0, {u}, {cm}\nv_cndmask_b32 {pub[6]}, 0, {u}, {cm}")
    a("Lk1_wr:\n@reset")
    for i in range(3): a(f"ds_write_b128 {vk0}, {pub[4*i:4*i+4]} offset:{1024*i}")
    vtr = V()
    a(f"v_lshrrev_b32 {t}, 5, {lane}\nv_bfe_u32 {u}, {lane}, 2, 2\nv_lshl_add_u32 {t}, {t}, 2, {u}\nv_mul_u32_u24 {vtr}, 48, {t}")
    a(f"v_bfe_u32 {t}, {lane}, 4, 1\nv_and_b32 {u}, 3, {lane}\nv_lshl_add_u32 {t}, {t}, 2, {u}\nv_lshlrev_b32 {t}, 2, {t}")
    a(f"s_mov_b32 {st2}, {nib([0,2,1,3,4,5,5,5]):#x}\nv_bfe_u32 {t}, {st2}, {t}, 4\nv_lshl_add_u32 {vtr}, {t}, 3, {vtr}")
    a(f"s_mul_i32 {st}, {wv}, 3072\ns_add_u32 {st}, {st}, {L_KV+1536}\nv_add_u32 {vtr}, {st}, {vtr}")
    a("s_waitcnt lgkmcnt(0)\ns_barrier")
    kf = [bias[6*i:6*i+6] for i in range(4)]
    def rd_k(tl): return [f"ds_read_b128 {kf[tl%4][0:4]}, {vk0} offset:{tl*3072}", f"ds_read_b64 {kf[tl%4][4:6]}, {vk1} offset:{tl*3072+1024}"]
    mx = V(2)
    def max_ops(tl):
        o = []
        for j in range(8):
            m = mx[j & 1]
            if tl == 0 and j < 2: o.append(f"v_max_f32 {m}, {Sx[tl][2*j]}, {Sx[tl][2*j+1]}")
            else: o.append(f"v_max3_f32 {m}, {Sx[tl][2*j]}, {Sx[tl][2*j+1]}, {m}")
        return o
    a('\n'.join(rd_k(0) + rd_k(1) + rd_k(2)))
    for tl in range(9):
        if tl + 3 < 9: a('\n'.join(rd_k(tl+3)))
        c = Sx[tl] if tl in (0, 8) else 0
        mo = max_ops(tl-2) if tl >= 2 else []
        a(f"v_mfma_f32_32x32x16_bf16 {Sx[tl]}, {kf[tl%4][0:4]}, {Q0}, {c}")
        a('\n'.join(mo[:4]))
        a(f"v_mfma_f32_32x32x8bf16_1k {Sx[tl]}, {kf[tl%4][4:6]}, {Q1}, {Sx[tl]}")
        a('\n'.join(mo[4:]))
    vf = [bias[8*i:8*i+8] for i in range(3)]
    def rd_v(tl): return [f"ds_read_b64_tr_b16 {vf[tl%3][2*q:2*q+2]}, {vtr} offset:{tl*3072 + q*8*48}" for q in range(4)]
    a('\n'.join(max_ops(7)))
    a('\n'.join(rd_v(0) + rd_v(1)))
    a('\n'.join(max_ops(8)))
    a(f"v_max_f32 {mx[0]}, {mx[0]}, {mx[1]}\nv_mov_b32 {mx[1]}, {mx[0]}\nv_permlane32_swap_b32 {mx[0]}, {mx[1]}\nv_max_f32 {mx[0]}, {mx[0]}, {mx[1]}")
    O = V(16)
    def pv(tl): return [f"v_mfma_f32_32x32x16_bf16 {O}, {vf[tl%3][4*s_:4*s_+4]}, {Sx[tl][4*s_:4*s_+4]}, {O if (tl or s_) else 0}" for s_ in range(2)]
    for tl in range(9):
        s_ = Sx[tl]
        ops = [f"v_pk_add_f32 {s_[2*j:2*j+2]}, {s_[2*j:2*j+2]}, {mx} op_sel_hi:[1,0] neg_lo:[0,1] neg_hi:[0,1]" for j in range(8)]
        ops += [f"v_exp_f32 {s_[j]}, {s_[j]}" for j in range(16)]
        ops += [f"v_cvt_pk_bf16_f32 {s_[j]}, {s_[2*j]}, {s_[2*j+1]}" for j in range(8)]
        if tl >= 1:
            p = pv(tl-1); ops.insert(4, p[0]); ops.insert(14, p[1])
            if tl + 1 < 9: ops[18:18] = rd_v(tl+1)
        a('\n'.join(ops))
    a('\n'.join(pv(8)))
    vo = V()
    a(f"v_bfe_u32 {t}, {lane}, 4, 1\nv_mul_u32_u24 {vo}, 20480, {t}\nv_and_b32 {u}, 15, {lane}\nv_lshl_add_u32 {vo}, {u}, 4, {vo}")
    a(f"v_lshrrev_b32 {u}, 5, {lane}\nv_lshl_add_u32 {t}, {u}, 8, {vo}")
    a(f"s_lshr_b32 {st}, {head}, 1\ns_mul_i32 {st}, {st}, 1280\ns_add_u32 {st}, {st}, {sxo}\ns_and_b32 {sid}, {head}, 1")
    a(f"s_lshl_b32 {st2}, {sid}, 3\ns_add_u32 {st2}, {st2}, {st}\ns_mul_i32 {sid}, {sid}, 768\ns_add_u32 {st}, {st}, {sid}")
    a(f"v_rcp_f32 {mx[0]}, {O[12]}")
    for j in range(6): a(f"v_pk_mul_f32 {O[2*j:2*j+2]}, {O[2*j:2*j+2]}, {mx} op_sel_hi:[1,0]")
    for j in range(6): a(f"v_cvt_pk_bf16_f32 {O[j]}, {O[2*j]}, {O[2*j+1]}")
    a(f"buffer_store_dwordx4 {O[0:4]}, {t}, {rof}, {st} offen")
    a(f"s_mov_b32 exec_hi, 0")
    a(f"buffer_store_dwordx2 {O[4:6]}, {vo}, {rof}, {st2} offen offset:512")
    a("Lk1_end:\ns_endpgm")
    return dict(name='k1_kernel', lines=finish(a), vgpr=V.hi, agpr=0, grid=256, block=512, lds=L_K1END)

def interleave_items(a_items, b_items):
    out = []; n = len(a_items); m = len(b_items); k = 0
    for i, g in enumerate(a_items):
        out.append(g)
        tgt = (i + 1) * m // n
        while k < tgt: out.append(b_items[k]); k += 1
    return out


def role_wg(a, sid):
    S = Alloc('s', 60, 100); V = Alloc('v', 1, 128)
    rw, rf, rmp, rup = S(4), S(4), S(4), S(4)
    ksp, cgp, wv, t0, t1 = S(), S(), S(), S(), S()
    lane, t, u, voff, vmo, vmv, vmr = V(), V(), V(), V(), V(), V(), V()
    a(f"s_and_b32 {ksp}, {sid}, 7\ns_lshr_b32 {cgp}, {sid}, 3")
    a(f"v_lshrrev_b32 {t}, 6, v0\nv_and_b32 {lane}, 63, v0\nv_readfirstlane_b32 {wv}, {t}")
    a(f"v_lshrrev_b32 {u}, 3, {lane}\nv_mul_u32_u24 {voff}, 3456, {u}\nv_and_b32 {u}, 7, {lane}\nv_lshl_add_u32 {voff}, {u}, 4, {voff}")
    a(f"s_mul_i32 {t0}, {ksp}, 320\nv_lshl_add_u32 {vmo}, {lane}, 3, {t0}")
    LMV = 20480
    a(f"v_lshlrev_b32 {vmv}, 9, {t}\nv_lshrrev_b32 {u}, 5, {lane}\nv_lshl_add_u32 {vmr}, {u}, 4, {vmv}\nv_lshl_add_u32 {vmv}, {lane}, 2, {vmv}")
    a("s_waitcnt lgkmcnt(0)")
    a(f"s_cmp_lt_u32 {wv}, 2\ns_cselect_b32 {rw[0]}, s{P['wg']}, s{P['wu']}\ns_cselect_b32 {rw[1]}, s{P['wg']+1}, s{P['wu']+1}")
    a(f"s_mov_b32 {rw[2]}, {640*1728*2:#x}\ns_mov_b32 {rw[3]}, 0x20000")
    a(f"s_and_b32 {t1}, {wv}, 1\ns_mul_i32 {t1}, {t1}, {40*3456}\ns_mul_i32 {t0}, {ksp}, {80*3456}\ns_add_u32 {t0}, {t0}, {t1}\ns_lshl_b32 {t1}, {cgp}, 7\ns_add_u32 {t0}, {t0}, {t1}")
    a(f"s_mul_i32 {t1}, {wv}, 5120")
    for i in range(5):
        a(f"s_add_u32 m0, {t1}, {1024*i}")
        a(f"buffer_load_dwordx4 {voff}, {rw}, {t0} offen lds")
        if i < 4: a(f"s_add_u32 {t0}, {t0}, {8*3456}")
    srd(a, rmp, 'ws', WS_MODP, SZ_MODP)
    mp = modvec_load(a, V, rmp, vmo, t0, 4*640, 3*640)
    srd(a, rf, 'ws', WS_WGF, SZ_WGF); srd(a, rup, 'ws', WS_UP, SZ_UP)
    vtr, vo, one = V(), V(), V()
    a(f"v_lshrrev_b32 {t}, 5, {lane}\nv_bfe_u32 {u}, {lane}, 2, 2\nv_lshl_add_u32 {t}, {t}, 3, {u}\nv_lshlrev_b32 {vtr}, 7, {t}")
    a(f"v_bfe_u32 {t}, {lane}, 4, 1\nv_mul_u32_u24 {t}, 10240, {t}\nv_add_u32 {vtr}, {vtr}, {t}")
    a(f"v_and_b32 {t}, 1, {lane}\nv_lshl_add_u32 {vtr}, {t}, 4, {vtr}\nv_bfe_u32 {t}, {lane}, 1, 1\nv_lshl_add_u32 {vtr}, {t}, 3, {vtr}")
    a(f"s_lshl_b32 {t1}, {wv}, 5\nv_add_u32 {vtr}, {t1}, {vtr}")
    a(f"v_lshlrev_b32 {vo}, 4, {lane}\nv_mov_b32 {one}, {ONES_BF:#x}")
    modvec_finish(a, mp, vmv, LMV)
    a("s_waitcnt vmcnt(0)\ns_barrier")
    fr = [V(4) for _ in range(5)]; sp = [V(4) for _ in range(5)]; sap = [V(4) for _ in range(5)]
    msk, tmp, acc = V(8), V(8), V(2)
    for k in range(5):
        for uu in range(2): a(f"ds_read_b64_tr_b16 {fr[k][2*uu:2*uu+2]}, {vtr} offset:{(16*k+4*uu)*128}")
        a(f"ds_read_b128 {sp[k]}, {vmr} offset:{LMV+32*k}\nds_read_b128 {sap[k]}, {vmr} offset:{LMV+256+32*k}")
    a(f"s_lshl_b32 {t0}, {cgp}, 2\ns_add_u32 {t0}, {t0}, {wv}\ns_mul_i32 {t1}, {ksp}, 108\ns_add_u32 {t1}, {t1}, {t0}\ns_lshl_b32 {t1}, {t1}, 8")
    a(f"s_mul_i32 {t0}, {t0}, 40960\ns_mul_i32 {cgp}, {ksp}, 5120\ns_add_u32 {t0}, {t0}, {cgp}\ns_add_u32 {cgp}, {t0}, 4096")
    for k in range(5):
        a('\n'.join(scale_ops([fr[k]], [acc[1]], k == 0, sp[k], sap[k], msk, tmp, [acc[0]], one)))
        a(f"buffer_store_dwordx4 {fr[k]}, {vo}, {rf}, {t0 if k<4 else cgp} offen offset:{1024*(k&3)}")
    a(f"v_permlane32_swap_b32 {acc[0]}, {acc[1]}\nv_add_f32 {acc[0]}, {acc[0]}, {acc[1]}\nv_lshlrev_b32 {vo}, 2, {lane}")
    a(f"buffer_store_dword {acc[0]}, {vo}, {rup}, {t1} offen")
    a("s_endpgm")
    return V.hi

def gen_narrow(name, NK, kind):
    a = Asm()
    S = Alloc('s', 40, 100); V = Alloc('v', 1, 256)
    load_args(a)
    extra = 216 if kind == 'wo' else 0
    a(f"s_cmp_ge_u32 s2, 256\ns_cbranch_scc1 L{name}_other")
    rx, rw, rm, rr, ro, rs = S(4), S(4), S(4), S(4), S(4), S(4)
    rb, cb, wv, st, st2, sxo, swo, slds = S(), S(), S(), S(), S(), S(), S(), S()
    lane, l16, t, u = V(), V(), V(), V()
    a(f"s_bfe_u32 {rb}, s2, 0x20001\ns_lshl_b32 {rb}, {rb}, 3\ns_lshr_b32 {st}, s2, 5\ns_add_u32 {rb}, {rb}, {st}")
    a(f"s_and_b32 {cb}, s2, 1\ns_lshl_b32 {cb}, {cb}, 2\ns_bfe_u32 {st}, s2, 0x20003\ns_add_u32 {cb}, {cb}, {st}")
    a(f"v_lshrrev_b32 {t}, 6, v0\nv_and_b32 {lane}, 63, v0\nv_readfirstlane_b32 {wv}, {t}")
    a(f"v_lshlrev_b32 {l16}, 4, {lane}")
    a(f"s_lshl_b32 {sxo}, {rb}, 2\ns_add_u32 {sxo}, {sxo}, {wv}\ns_mul_i32 {sxo}, {sxo}, {NK*1024}")
    a(f"s_mul_i32 {slds}, {wv}, 5120\ns_mul_i32 {swo}, {cb}, {NK*5120}\ns_add_u32 {swo}, {swo}, {slds}")
    a("s_waitcnt lgkmcnt(0)")
    if kind == 'wo':
        srd(a, rx, 'ws', WS_OF, SZ_ACT16); srd(a, rw, 'ws', WS_WOF, SZ_WOF)
    else:
        srd(a, rx, 'ws', WS_ACTF, SZ_ACTF); srd(a, rw, 'ws', WS_WDF, SZ_WDF)
    D = 3; NSL = 4
    nst = (NK + 3)//4
    X = [V(16) for _ in range(D+1)]
    wf = [V(20) for _ in range(2)]
    acc = V(20)
    def loads(i):
        o = []
        for c in range(5):
            g = []
            if c in (0, 4):
                g += [f"s_add_u32 {st2}, {swo}, {i*20480 + c*1024}", f"s_add_u32 m0, {slds}, {(i%NSL)*20480 + c*1024}"]
            g += [f"@tag w{i}", f"buffer_load_dwordx4 {l16}, {rw}, {st2} offen offset:{(c&3)*1024} lds"]
            o.append(g)
        for k in range(min(4, NK - 4*i)):
            g = [f"s_add_u32 {st2}, {sxo}, {i*4096}"] if k == 0 else []
            g.append(f"buffer_load_dwordx4 {X[i%(D+1)][4*k:4*k+4]}, {l16}, {rx}, {st2} offen offset:{k*1024}")
            o.append(g)
        return o
    for i in range(D):
        for g in loads(i): a('\n'.join(g))
    gm = V(20); xr = V(10); vrm, vrm2, vfr, vfr2, vg, vg2 = V(), V(), V(), V(), V(), V()
    srd(a, rm, 'ws', WS_MOD, SZ_MOD)
    srd(a, rr, 'x' if kind == 'wo' else 'out', 0, SZ_ACT16)
    srd(a, ro, 'ws', WS_X1F, SZ_ACT16)
    if kind == 'wo': srd(a, rs, 'ws', WS_ST2, SZ_ST2)
    srm, sfr, sg = S(), S(), S()
    a(f"v_lshrrev_b32 {t}, 4, {lane}\nv_and_b32 {u}, 15, {lane}")
    a(f"v_mul_u32_u24 {vrm2}, 1280, {u}\nv_lshl_add_u32 {vrm}, {t}, 4, {vrm2}\nv_lshl_add_u32 {vrm2}, {t}, 3, {vrm2}")
    a(f"v_lshlrev_b32 {vfr2}, 4, {u}\nv_lshl_add_u32 {vfr}, {t}, 9, {vfr2}")
    a(f"v_lshlrev_b32 {vg}, 5, {t}\nv_lshlrev_b32 {vg2}, 4, {t}")
    a(f"v_lshrrev_b32 {u}, 1, {t}\nv_lshl_add_u32 {vfr2}, {u}, 9, {vfr2}\nv_and_b32 {u}, 1, {t}\nv_lshl_add_u32 {vfr2}, {u}, 3, {vfr2}")
    a(f"s_lshl_b32 {srm}, {rb}, 2\ns_add_u32 {srm}, {srm}, {wv}\ns_mul_i32 {srm}, {srm}, {16*1280}\ns_mul_i32 {st}, {cb}, 160\ns_add_u32 {srm}, {srm}, {st}")
    a(f"s_lshr_b32 {st}, {wv}, 1\ns_lshl_b32 {sfr}, {rb}, 1\ns_add_u32 {sfr}, {sfr}, {st}\ns_mul_i32 {sfr}, {sfr}, 40960\ns_mul_i32 {st}, {cb}, 5120\ns_add_u32 {sfr}, {sfr}, {st}")
    a(f"s_and_b32 {st}, {wv}, 1\ns_lshl_b32 {st}, {st}, 8\ns_add_u32 {sfr}, {sfr}, {st}")
    a(f"s_mul_i32 {sg}, {cb}, 320\ns_add_u32 {sg}, {sg}, {(2 if kind=='wo' else 5)*2560}")
    sfr2 = S(); a(f"s_add_u32 {sfr2}, {sfr}, 4096")
    epi = [[f"buffer_load_dwordx4 {gm[4*q:4*q+4]}, {vg}, {rm}, {sg} offen offset:{128*(q>>1) + 16*(q&1)}"] for q in range(4)]
    epi.append([f"buffer_load_dwordx4 {gm[16:20]}, {vg2}, {rm}, {sg} offen offset:256"])
    def rowmaj(op, regs): return [[f"buffer_{op}_dwordx4 {regs[0:4]}, {vrm}, {rr}, {srm} offen"], [f"buffer_{op}_dwordx4 {regs[4:8]}, {vrm}, {rr}, {srm} offen offset:64"], [f"buffer_{op}_dwordx2 {regs[8:10]}, {vrm2}, {rr}, {srm} offen offset:128"]]
    def fragmaj(op, regs): return [[f"buffer_{op}_dwordx4 {regs[0:4]}, {vfr}, {ro}, {sfr} offen"], [f"buffer_{op}_dwordx4 {regs[4:8]}, {vfr}, {ro}, {sfr} offen offset:2048"], [f"buffer_{op}_dwordx2 {regs[8:10]}, {vfr2}, {ro}, {sfr2} offen"]]
    epi += rowmaj('load', xr) if kind == 'wo' else fragmaj('load', xr)
    vw2 = V(); a(f"v_add_u32 {vw2}, 40960, {l16}")
    def rd_w(ks):
        i, k = divmod(ks, 4); off = (i % NSL)*20480 + k*5120
        base = l16
        if off >= 40960: base, off = vw2, off - 40960
        return [f"ds_read_b128 {wf[ks&1][4*c:4*c+4]}, {base} offset:{off + c*1024}" for c in range(5)]
    for i in range(nst):
        a(f"@waitvm w{i}\ns_barrier")
        nk = min(4, NK - 4*i)
        a('\n'.join(rd_w(4*i)))
        main = []
        for k in range(nk):
            ks = 4*i + k
            nx = rd_w(ks+1) if k + 1 < nk else [None]*5
            for c in range(5):
                cc = acc[4*c:4*c+4]
                g = [nx[c]] if nx[c] else []
                main.append(g + [f"v_mfma_f32_16x16x32_bf16 {cc}, {wf[ks&1][4*c:4*c+4]}, {X[i%(D+1)][4*k:4*k+4]}, {cc if ks else 0}"])
        fill = loads(i+D) if i + D < nst else (epi if i + D == nst else [])
        for l in interleave(main, fill): a(l)
    f = wf[0]
    for j in range(10): a(f"v_lshlrev_b32 {f[2*j]}, 16, {xr[j]}\nv_and_b32 {f[2*j+1]}, 0xffff0000, {xr[j]}")
    for j in range(10): a(f"v_pk_fma_f32 {f[2*j:2*j+2]}, {acc[2*j:2*j+2]}, {gm[2*j:2*j+2]}, {f[2*j:2*j+2]}")
    for j in range(10): a(f"v_cvt_pk_bf16_f32 {xr[j]}, {f[2*j]}, {f[2*j+1]}")
    for g in (fragmaj('store', xr) if kind == 'wo' else rowmaj('store', xr)): a('\n'.join(g))
    if kind == 'wo':
        one, sm, sq = V(), V(), V()
        a(f"v_mov_b32 {one}, {ONES_BF:#x}")
        for j in range(10):
            a(f"v_dot2_f32_bf16 {sm}, {xr[j]}, {one}, {sm if j else 0}\nv_dot2_f32_bf16 {sq}, {xr[j]}, {xr[j]}, {sq if j else 0}")
        a(f"v_and_b32 {u}, 15, {lane}\nv_lshlrev_b32 {u}, 6, {u}\nv_lshrrev_b32 {t}, 5, {lane}\nv_lshl_add_u32 {u}, {t}, 2, {u}")
        a(f"s_lshl_b32 {st}, {rb}, 2\ns_add_u32 {st}, {st}, {wv}\ns_lshl_b32 {st}, {st}, 10\ns_lshl_b32 {st2}, {cb}, 3\ns_add_u32 {st}, {st}, {st2}")
        a(f"v_permlane32_swap_b32 {sm}, {sq}\nv_add_f32 {sm}, {sm}, {sq}\nv_mov_b32 {sq}, {sm}\nv_permlane16_swap_b32 {sm}, {sq}\nv_add_f32 {sm}, {sm}, {sq}")
        a(f"buffer_store_dword {sm}, {u}, {rs}, {st} offen")
    a("s_endpgm")
    lines = auto_wait(a.lines)
    b = Asm(); b.label(f"L{name}_other"); hi = V.hi
    if extra:
        b(f"s_sub_u32 s3, s2, 256\ns_cmp_lt_u32 s3, {extra}\ns_cbranch_scc1 L{name}_wg\ns_endpgm\nL{name}_wg:")
        hi = max(hi, role_wg(b, Reg('s', 3)))
    else: b("s_endpgm")
    lines += auto_wait(b.lines)
    lines, _ = fix_hazards(lines)
    return dict(name=name + '_kernel', lines=lines, vgpr=hi, agpr=0, grid=256 + extra, block=256, lds=NSL*20480)

def gen_k3():
    a = Asm()
    S = Alloc('s', 40, 100); V = Alloc('v', 1, 256)
    load_args(a)
    a("s_cmp_ge_u32 s2, 256\ns_cbranch_scc1 Lk3_end")
    rx, rw, ru, rs, ro = S(4), S(4), S(4), S(4), S(4)
    rb, cb, u0, wv, st, st2, sxo, swo, slds = S(), S(), S(), S(), S(), S(), S(), S(), S()
    lane, l16, t, u = V(), V(), V(), V()
    a(f"s_and_b32 {rb}, s2, 1\ns_lshl_b32 {rb}, {rb}, 3\ns_lshr_b32 {st}, s2, 5\ns_add_u32 {rb}, {rb}, {st}")
    a(f"s_bfe_u32 {cb}, s2, 0x20001\ns_lshl_b32 {cb}, {cb}, 2\ns_bfe_u32 {st}, s2, 0x20003\ns_add_u32 {cb}, {cb}, {st}")
    a(f"s_mul_i32 {u0}, {cb}, 7\ns_mul_i32 {st}, {cb}, 6\ns_add_u32 {st}, {st}, 11\ns_min_u32 {u0}, {u0}, {st}")
    a(f"v_lshrrev_b32 {t}, 6, v0\nv_and_b32 {lane}, 63, v0\nv_readfirstlane_b32 {wv}, {t}")
    a(f"v_lshlrev_b32 {l16}, 4, {lane}")
    a(f"s_lshl_b32 {sxo}, {rb}, 2\ns_add_u32 {sxo}, {sxo}, {wv}\ns_mul_i32 {sxo}, {sxo}, 40960")
    a(f"s_mul_i32 {slds}, {wv}, 7168\ns_mul_i32 {swo}, {u0}, 40960\ns_lshl_b32 {st}, {wv}, 10\ns_add_u32 {swo}, {swo}, {st}")
    a("s_waitcnt lgkmcnt(0)")
    srd(a, rx, 'ws', WS_X1F, SZ_ACT16); srd(a, rw, 'ws', WS_WGF, SZ_WGF)
    D = 3; NSL = 4; nst = 10; SL = 28672; L_U = NSL*SL
    X = [V(16) for _ in range(D+1)]
    wf = [V(28) for _ in range(2)]
    acc = V(112)
    def loads(i):
        o = []
        for c in range(7):
            o.append([f"s_add_u32 {st2}, {swo}, {c*40960 + i*4096}", f"s_add_u32 m0, {slds}, {(i%NSL)*SL + c*1024}",
                      f"@tag w{i}", f"buffer_load_dwordx4 {l16}, {rw}, {st2} offen lds"])
        for k in range(4):
            g = [f"s_add_u32 {st2}, {sxo}, {i*4096}"] if k == 0 else []
            g.append(f"buffer_load_dwordx4 {X[i%(D+1)][4*k:4*k+4]}, {l16}, {rx}, {st2} offen offset:{k*1024}")
            o.append(g)
        return o
    for i in range(D):
        for g in loads(i): a('\n'.join(g))
    srd(a, ru, 'ws', WS_UP, SZ_UP); srd(a, rs, 'ws', WS_ST2, SZ_ST2); srd(a, ro, 'ws', WS_ACTF, SZ_ACTF)
    vw2 = V(); a(f"v_add_u32 {vw2}, {2*SL}, {l16}")
    vu, vs_, mr, rstd = V(), V(), V(2), V(2)
    a(f"v_lshlrev_b32 {vu}, 3, v0\nv_and_b32 {vs_}, 31, {lane}\nv_lshlrev_b32 {vs_}, 6, {vs_}")
    def rd_w(ks):
        i, k = divmod(ks, 4); off = (i % NSL)*SL + k*7168
        base = l16
        if off >= 2*SL: base, off = vw2, off - 2*SL
        return [f"ds_read_b128 {wf[ks&1][4*c:4*c+4]}, {base} offset:{off + c*1024}" for c in range(7)]
    UPR = X[(7+D) % (D+1)]; STR = X[(8+D) % (D+1)]
    for i in range(nst):
        a(f"@waitvm w{i}")
        if i == 9: a("s_waitcnt lgkmcnt(0)")
        a("s_barrier")
        a('\n'.join(rd_w(4*i)))
        main = []
        for k in range(4):
            ks = 4*i + k
            nx = rd_w(ks+1) if k < 3 else [None]*7
            for c in range(7):
                cc = acc[16*c:16*c+16]
                g = [nx[c]] if nx[c] else []
                main.append(g + [f"v_mfma_f32_32x32x16_bf16 {cc}, {wf[ks&1][4*c:4*c+4]}, {X[i%(D+1)][4*k:4*k+4]}, {cc if ks else 0}"])
        if i + D < nst: fill = loads(i+D)
        elif i == 7:
            fill = [[f"s_lshl_b32 {st}, {u0}, 8"]]
            fill += [[f"s_add_u32 {st2}, {st}, {p*108*256}", f"buffer_load_dwordx2 {UPR[2*p:2*p+2]}, {vu}, {ru}, {st2} offen"] for p in range(8)]
        elif i == 8:
            fill = [[f"s_lshl_b32 {st}, {rb}, 2", f"s_add_u32 {st}, {st}, {wv}", f"s_lshl_b32 {st}, {st}, 11"]]
            fill += [[f"buffer_load_dwordx4 {STR[4*p:4*p+4]}, {vs_}, {rs}, {st} offen offset:{16*p}"] for p in range(4)]
            fill += [[]]*8
            fill += [[f"v_pk_add_f32 {UPR[2*p:2*p+2]}, {UPR[2*p:2*p+2]}, {UPR[2*p+8:2*p+10]}"] for p in range(4)]
            fill += [[f"v_pk_add_f32 {UPR[2*p:2*p+2]}, {UPR[2*p:2*p+2]}, {UPR[2*p+4:2*p+6]}"] for p in range(2)]
            fill += [[f"v_pk_add_f32 {UPR[0:2]}, {UPR[0:2]}, {UPR[2:4]}"], [f"v_add_u32 {vu}, {L_U}, {vu}"], [f"ds_write_b64 {vu}, {UPR[0:2]}"]]
        else:
            fill = [[]]*6
            fill += [[f"v_pk_add_f32 {STR[2*p:2*p+2]}, {STR[2*p:2*p+2]}, {STR[2*p+8:2*p+10]}"] for p in range(4)]
            fill += [[f"v_pk_add_f32 {STR[2*p:2*p+2]}, {STR[2*p:2*p+2]}, {STR[2*p+4:2*p+6]}"] for p in range(2)]
            fill += [[f"v_pk_add_f32 {STR[0:2]}, {STR[0:2]}, {STR[2:4]}"]]
            fill += [[f"v_mul_f32 {STR[0]}, {f2u(1/640):#x}, {STR[0]}"], [f"v_mov_b32 {STR[2]}, {f2u(1e-5):#x}"],
                     [f"v_fmac_f32 {STR[2]}, {f2u(1/640):#x}, {STR[1]}"], [f"v_fma_f32 {STR[2]}, -{STR[0]}, {STR[0]}, {STR[2]}"],
                     [f"v_rsq_f32 {rstd[0]}, {STR[2]}"], [f"v_lshrrev_b32 {vu}, 5, {lane}"], [f"v_mul_f32 {mr[0]}, {STR[0]}, {rstd[0]}"],
                     [f"v_lshlrev_b32 {vu}, 4, {vu}"], [f"v_add_u32 {vu}, {L_U}, {vu}"]]
        for l in interleave(main, fill): a(l)
    vo = V(); nl = V(2); onep = V(2)
    a(f"v_bfe_u32 {t}, {lane}, 4, 1\nv_mul_u32_u24 {vo}, 55296, {t}\nv_and_b32 {u}, 15, {lane}\nv_lshl_add_u32 {vo}, {u}, 4, {vo}\nv_lshrrev_b32 {u}, 5, {lane}\nv_lshl_add_u32 {vo}, {u}, 8, {vo}")
    a(f"s_lshl_b32 {st}, {rb}, 2\ns_add_u32 {st}, {st}, {wv}\ns_mul_i32 {st}, {st}, {2*55296}\ns_lshl_b32 {st2}, {u0}, 9\ns_add_u32 {st}, {st}, {st2}")
    a(f"v_mov_b32 {nl[0]}, {LOG2E | 0x80000000:#x}\nv_mov_b32 {onep[0]}, 1.0")
    ub = [Reg('v', X[0].idx, 32), Reg('v', X[2].idx, 32)]
    assert X[1].idx == X[0].idx + 16 and X[3].idx == X[2].idx + 16
    def rd_u(c): return [f"ds_read_b128 {ub[c&1][4*q:4*q+4]}, {vu} offset:{c*256 + (q>>2)*128 + (q&3)*32}" for q in range(8)]
    e = wf[0]
    a('\n'.join(rd_u(0)))
    for c in range(7):
        if c < 6: a('\n'.join(rd_u(c+1)))
        U = ub[c&1]; A = acc[16*c:16*c+16]
        for j in range(8): a(f"v_pk_fma_f32 {U[16+2*j:18+2*j]}, {U[2*j:2*j+2]}, {mr}, {U[16+2*j:18+2*j]} op_sel_hi:[1,0,1] neg_lo:[0,1,0] neg_hi:[0,1,0]")
        for j in range(8): a(f"v_pk_fma_f32 {A[2*j:2*j+2]}, {A[2*j:2*j+2]}, {rstd}, {U[16+2*j:18+2*j]} op_sel_hi:[1,0,1]")
        for j in range(4): a(f"v_pk_mul_f32 {e[2*j:2*j+2]}, {A[2*j:2*j+2]}, {nl} op_sel_hi:[1,0]")
        for j in range(8): a(f"v_exp_f32 {e[j]}, {e[j]}")
        for j in range(4): a(f"v_pk_mul_f32 {A[2*j:2*j+2]}, {A[2*j:2*j+2]}, {A[8+2*j:10+2*j]}")
        for j in range(4): a(f"v_pk_add_f32 {e[2*j:2*j+2]}, {e[2*j:2*j+2]}, {onep} op_sel_hi:[1,0]")
        for j in range(8): a(f"v_rcp_f32 {e[j]}, {e[j]}")
        for j in range(4): a(f"v_pk_mul_f32 {A[2*j:2*j+2]}, {A[2*j:2*j+2]}, {e[2*j:2*j+2]}")
        for j in range(4): a(f"v_cvt_pk_bf16_f32 {A[8+j]}, {A[2*j]}, {A[2*j+1]}")
        a(f"buffer_store_dwordx4 {A[8:12]}, {vo}, {ro}, {st} offen offset:{c*512}")
    a("Lk3_end:\ns_endpgm")
    return dict(name='k3_kernel', lines=finish(a), vgpr=V.hi, agpr=0, grid=256, block=256, lds=L_U + 2048)

def gen_k0():
    a = Asm()
    load_args(a)
    roles = [('wq', 160, role_wq), ('xn', 128, role_xn), ('mod', 240, role_mod), ('wn', 148, role_wn)]
    hi = 0
    a("s_mov_b32 s3, s2")
    for n, cnt, f in roles:
        a(f"s_cmp_lt_u32 s3, {cnt}\ns_cbranch_scc1 Lk0_{n}\ns_sub_u32 s3, s3, {cnt}")
    a("s_endpgm")
    out = list(a.lines)
    for n, cnt, f in roles:
        b = Asm(); b.label(f"Lk0_{n}")
        hi = max(hi, f(b, Reg('s', 3)))
        out += auto_wait(b.lines)
    out, _ = fix_hazards(out)
    return dict(name='k0_kernel', lines=out, vgpr=hi, agpr=0, grid=sum(r[1] for r in roles), block=256, lds=20480)

def build(kernels, path):
    hdr = open('adaLN_cond__sliding_block__swiglu_ffn__prompt.s.ref').read().split('\n')
    hdr = [l for l in hdr if l.startswith(';') and '@launch' not in l and 'Override launch' not in l and 'grid=ceil' not in l]
    s = '\n'.join(hdr) + '\n'
    for k in kernels: s += f"; @launch kernel={k['name']} grid=({k['grid']},1,1) block=({k['block']},1,1) lds={k['lds']}\n"
    s += '.amdgcn_target "amdgcn-amd-amdhsa--gfx950"\n.text\n'
    seen = set()
    for k in kernels:
        if k['name'] in seen: continue
        seen.add(k['name']); s += kernel_text(k['name'], k['lines'])
    s += '.section .rodata,"a"\n'
    seen = set()
    for k in kernels:
        if k['name'] in seen: continue
        seen.add(k['name']); s += kd_text(k['name'], k['vgpr'], k['agpr'])
    open(path, 'w').write(s)

if __name__ == '__main__':
    build([gen_k0(), gen_k1(), gen_narrow('k2', 20, 'wo'), gen_k3(), gen_narrow('k4', 54, 'wd')], sys.argv[1] if len(sys.argv) > 1 else 'k.s')
```

```python
import sys; sys.path.insert(0,'tools')
from gen import *
ks = [gen_k0(), gen_k1(), gen_narrow('k2', 20, 'wo'), gen_k3(), gen_narrow('k4', 54, 'wd')]
noop = dict(name='nop_kernel', lines=['s_endpgm'], vgpr=8, agpr=0, grid=256, block=256, lds=0)
build(ks + [noop]*5, 'v_noop5.s')
build([noop]*5 + ks, 'v_noop5pre.s')
build(ks + ks, 'v_twice.s')
```

```python
import sys
sys.path.insert(0, 'tools')
from asmgen import *
from layout import *

LOG2E = 0x3fb8aa3b
ONES_BF = 0x3f803f80
def f2u(x):
    import struct
    return struct.unpack('<I', struct.pack('<f', x))[0]

P = dict(x=16, wqkv=18, wo=20, wg=24, wu=26, wd=28, c=30, wmod=32, out=34, dbg=36, ws=38)
def load_args(a):
    a("s_load_dwordx16 s[16:31], s[0:1], 0")
    a("s_load_dwordx8 s[32:39], s[0:1], 64")
def srd(a, d, ptr, off, size):
    p = P[ptr]
    if off:
        a(f"s_add_u32 {d[0]}, s{p}, {off:#x}")
        a(f"s_addc_u32 {d[1]}, s{p+1}, 0")
    else:
        a(f"s_mov_b32 {d[0]}, s{p}")
        a(f"s_mov_b32 {d[1]}, s{p+1}")
    a(f"s_mov_b32 {d[2]}, {size:#x}")
    a(f"s_mov_b32 {d[3]}, 0x20000")

DIAG = False
WS_TS = 0x3000000
class Stamps:
    def __init__(self, a, kidx): self.a, self.k, self.n = a, kidx, 0
    def __call__(self):
        if not DIAG: return
        assert self.n < 8
        self.a(f"{'s_memtime' if DIAG == 2 else 's_memrealtime'} s[{4+0}:{5}]\ns_waitcnt lgkmcnt(0)\ns_mov_b32 s{6+self.n}, s4"); self.n += 1
    def flush(self):
        if not DIAG: return
        self()
        a = self.a
        a("s_mov_b64 exec, -1")
        a(f"s_add_u32 s40, s38, {WS_TS + self.k*1024*8*32:#x}\ns_addc_u32 s41, s39, 0\ns_mov_b32 s42, {1024*8*32}\ns_mov_b32 s43, 0x20000")
        a("v_lshrrev_b32 v1, 6, v0\nv_lshlrev_b32 v1, 5, v1\ns_lshl_b32 s4, s2, 8")
        for i in range(self.n): a(f"v_mov_b32 v2, s{6+i}\nbuffer_store_dword v2, v1, s[40:43], s4 offen offset:{4*i}")

def nib(vals):
    r = 0
    for i, v in enumerate(vals): r |= v << (4*i)
    return r

def role_mod(a, sid):
    T = Stamps(a, 0); T()
    S = Alloc('s', 40, 100); V = Alloc('v', 1, 128)
    rw, rc, rp = S(4), S(4), S(4)
    ks, cg, t0, t1 = S(), S(), S(), S()
    a(f"s_mul_hi_u32 {ks}, {sid}, {(2**32+59)//60:#x}")
    a(f"s_mul_i32 {t0}, {ks}, 60")
    a(f"s_sub_u32 {cg}, {sid}, {t0}")
    vrow, voff, vc = V(), V(), V()
    a(f"s_mul_i32 {t0}, {ks}, 160")
    a(f"v_lshrrev_b32 {vrow}, 3, v0")
    a(f"v_add_u32 {vrow}, {t0}, {vrow}")
    a(f"v_mul_u32_u24 {voff}, 7680, {vrow}")
    a(f"v_and_b32 {vc}, 7, v0")
    a(f"v_lshl_add_u32 {voff}, {vc}, 4, {voff}")
    a(f"s_lshl_b32 {t1}, {cg}, 7")
    a(f"v_add_u32 {voff}, {t1}, {voff}")
    a(f"v_lshlrev_b32 {vrow}, 1, {vrow}")
    a("s_waitcnt lgkmcnt(0)")
    srd(a, rw, 'wmod', 0, 640*3840*2); srd(a, rc, 'c', 0, 1280)
    w = [V(4) for _ in range(5)]; c = [V() for _ in range(5)]
    for i in range(5): a(f"buffer_load_ushort {c[i]}, {vrow}, {rc}, 0 offen offset:{64*i}")
    for i in range(5):
        a(f"s_mov_b32 {t0}, {32*7680*i}")
        a(f"buffer_load_dwordx4 {w[i]}, {voff}, {rw}, {t0} offen")
    srd(a, rp, 'ws', WS_MODP, SZ_MODP)
    ylo = [V() for _ in range(5)]; yhi = [V() for _ in range(5)]
    a(f"s_mov_b32 {t1}, {LOG2E | 0x80000000:#x}")
    for i in range(5): a(f"v_lshlrev_b32 {c[i]}, 16, {c[i]}")
    for i in range(5): a(f"v_mul_f32 {ylo[i]}, {t1}, {c[i]}")
    for i in range(5): a(f"v_exp_f32 {ylo[i]}, {ylo[i]}")
    for i in range(5): a(f"v_add_f32 {ylo[i]}, 1.0, {ylo[i]}")
    for i in range(5): a(f"v_rcp_f32 {ylo[i]}, {ylo[i]}")
    for i in range(5): a(f"v_mul_f32 {ylo[i]}, {c[i]}, {ylo[i]}")
    for i in range(5): a(f"v_cvt_pk_bf16_f32 {ylo[i]}, {ylo[i]}, 0")
    for i in range(5): a(f"v_lshlrev_b32 {yhi[i]}, 16, {ylo[i]}")
    acc = V(8)
    for i in range(5):
        for j in range(8):
            y = (ylo, yhi)[j & 1][i]
            a(f"v_dot2_f32_bf16 {acc[j]}, {w[i][j>>1]}, {y}, {acc[j] if i else 0}")
    for j in range(4): a(f"v_permlane32_swap_b32 {acc[j]}, {acc[j+4]}")
    for j in range(4): a(f"v_add_f32 {acc[j]}, {acc[j]}, {acc[j+4]}")
    for j in range(2): a(f"v_permlane16_swap_b32 {acc[j]}, {acc[j+2]}")
    for j in range(2): a(f"v_add_f32 {acc[j]}, {acc[j]}, {acc[j+2]}")
    for j in range(2): a(f"v_add_f32 {acc[j]}, {acc[j]}, {acc[j]} row_ror:8 row_mask:0xf bank_mask:0xf")
    t = V(); u = V()
    a(f"v_lshlrev_b32 {t}, 5, {vc}")
    a(f"v_bfe_u32 {u}, v0, 4, 2")
    a(f"v_lshl_add_u32 {t}, {u}, 3, {t}")
    a(f"v_lshrrev_b32 {u}, 6, v0")
    a(f"v_lshl_add_u32 {t}, {u}, 8, {t}")
    a(f"ds_write_b64 {t}, {acc[0:2]}")
    a("s_waitcnt lgkmcnt(0)\ns_barrier")
    a(f"v_and_b32 {t}, 63, v0\nv_lshlrev_b32 {t}, 2, {t}")
    for i in range(4): a(f"ds_read_b32 {acc[i]}, {t} offset:{256*i}")
    a(f"s_mul_i32 {t0}, {ks}, {3840*4}")
    a(f"s_lshl_b32 {t1}, {cg}, 8")
    a(f"s_add_u32 {t0}, {t0}, {t1}")
    a(f"v_add_f32 {acc[0]}, {acc[0]}, {acc[1]}\nv_add_f32 {acc[2]}, {acc[2]}, {acc[3]}\nv_add_f32 {acc[0]}, {acc[0]}, {acc[2]}")
    a(f"buffer_store_dword {acc[0]}, {t}, {rp}, {t0} offen")
    a("s_waitcnt vmcnt(0)" if DIAG else ""); T.flush()
    a("s_endpgm")
    return V.hi

def role_xn(a, sid):
    T = Stamps(a, 0); T()
    S = Alloc('s', 40, 100); V = Alloc('v', 1, 128)
    rx, rf, rfl = S(4), S(4), S(4)
    t0, t1 = S(), S()
    vrow, vc, voff, vo2 = V(), V(), V(), V()
    a(f"v_lshrrev_b32 {vrow}, 6, v0\nv_and_b32 {vc}, 3, v0\nv_lshl_add_u32 {vrow}, {vrow}, 2, {vc}")
    a(f"s_lshl_b32 {t0}, {sid}, 4\nv_add_u32 {vrow}, {t0}, {vrow}")
    a(f"v_bfe_u32 {vc}, v0, 2, 4")
    a(f"v_mul_u32_u24 {voff}, 1280, {vrow}\nv_lshl_add_u32 {voff}, {vc}, 4, {voff}")
    a("s_waitcnt lgkmcnt(0)")
    srd(a, rx, 'x', 0, SZ_ACT16)
    w = [V(4) for _ in range(5)]
    for i in range(5): a(f"buffer_load_dwordx4 {w[i]}, {voff}, {rx}, 0 offen offset:{256*i}")
    srd(a, rf, 'ws', WS_XF, SZ_ACT16); srd(a, rfl, 'ws', WS_FLAG, SZ_FLAG)
    z = V()
    a(f"v_mov_b32 {z}, 0\nv_and_b32 {vo2}, 63, v0\nv_lshlrev_b32 {vo2}, 2, {vo2}\ns_lshl_b32 {t1}, {sid}, 8")
    a(f"buffer_store_dword {z}, {vo2}, {rfl}, {t1} offen")
    a(f"v_lshrrev_b32 {vo2}, 5, {vrow}\nv_mul_u32_u24 {vo2}, 40960, {vo2}\nv_lshl_add_u32 {vo2}, {vc}, 9, {vo2}")
    a(f"v_and_b32 {vrow}, 31, {vrow}\nv_lshl_add_u32 {vo2}, {vrow}, 4, {vo2}")
    f = V(40); sm = V(2); tmp = V(2); one = V()
    a(f"v_mov_b32 {one}, {ONES_BF:#x}")
    def allreduce(x, t):
        a(f"v_add_f32 {x}, {x}, {x} row_ror:4 row_mask:0xf bank_mask:0xf")
        a(f"v_add_f32 {x}, {x}, {x} row_ror:8 row_mask:0xf bank_mask:0xf")
        a(f"v_mov_b32 {t}, {x}\nv_permlane16_swap_b32 {x}, {t}\nv_add_f32 {x}, {x}, {t}")
        a(f"v_mov_b32 {t}, {x}\nv_permlane32_swap_b32 {x}, {t}\nv_add_f32 {x}, {x}, {t}")
    for i in range(5):
        for j in range(4):
            a(f"v_dot2_f32_bf16 {sm[j&1]}, {w[i][j]}, {one}, {sm[j&1] if (i or j>1) else 0}")
            a(f"v_lshlrev_b32 {f[8*i+2*j]}, 16, {w[i][j]}")
            a(f"v_and_b32 {f[8*i+2*j+1]}, 0xffff0000, {w[i][j]}")
    a(f"v_add_f32 {sm[0]}, {sm[0]}, {sm[1]}")
    allreduce(sm[0], tmp[0])
    a(f"v_mul_f32 {sm[0]}, {f2u(-1.0/640):#x}, {sm[0]}")
    for j in range(20): a(f"v_pk_add_f32 {f[2*j:2*j+2]}, {f[2*j:2*j+2]}, {sm} op_sel_hi:[1,0]")
    for j in range(20):
        if j == 0: a(f"v_pk_mul_f32 {tmp}, {f[0:2]}, {f[0:2]}")
        else: a(f"v_pk_fma_f32 {tmp}, {f[2*j:2*j+2]}, {f[2*j:2*j+2]}, {tmp}")
    a(f"v_add_f32 {sm[0]}, {tmp[0]}, {tmp[1]}")
    allreduce(sm[0], tmp[0])
    a(f"v_mov_b32 {tmp[0]}, {f2u(1e-5):#x}")
    a(f"v_fmac_f32 {tmp[0]}, {f2u(1.0/640):#x}, {sm[0]}")
    a(f"v_rsq_f32 {sm[0]}, {tmp[0]}")
    for j in range(20): a(f"v_pk_mul_f32 {f[2*j:2*j+2]}, {f[2*j:2*j+2]}, {sm} op_sel_hi:[1,0]")
    for i in range(5):
        for j in range(4): a(f"v_cvt_pk_bf16_f32 {w[i][j]}, {f[8*i+2*j]}, {f[8*i+2*j+1]}")
        a(f"s_mov_b32 {t0}, {8192*i}")
        a(f"buffer_store_dwordx4 {w[i]}, {vo2}, {rf}, {t0} offen")
    a("s_waitcnt vmcnt(0)" if DIAG else ""); T.flush()
    a("s_endpgm")
    return V.hi

QUADS = None
def wq_quads(par):
    base, tail = (0, 4) if par == 0 else (1, 0)
    q = [(0, i) for i in range(5)] + [(2, tail)] + [(1, i) for i in range(5)] + [(1, 4)]
    q += [(2, base), (2, base+2), (2, base+1), (2, base+3)]
    return q
def role_wq(a, sid):
    T = Stamps(a, 0); T()
    S = Alloc('s', 40, 100); V = Alloc('v', 1, 128)
    rw, rf = S(4), S(4)
    ks, hg, wv, t0, t1 = S(), S(), S(), S(), S()
    lane, t, u = V(), V(), V()
    a(f"s_lshr_b32 {ks}, {sid}, 2\ns_and_b32 {hg}, {sid}, 3")
    a(f"v_lshrrev_b32 {t}, 6, v0\nv_and_b32 {lane}, 63, v0\nv_readfirstlane_b32 {wv}, {t}")
    off = [V() for _ in range(5)]
    for i in range(5):
        a(f"v_add_u32 {t}, {64*i}, {lane}")
        a(f"v_mul_u32_u24 {u}, 3277, {t}\nv_lshrrev_b32 {u}, 16, {u}")
        a(f"v_mul_u32_u24 {off[i]}, {3840-320}, {u}\nv_lshl_add_u32 {off[i]}, {t}, 4, {off[i]}")
    a(f"s_mul_i32 {t0}, {ks}, {16*3840}\ns_mul_i32 {t1}, {wv}, 1280\ns_add_u32 {t0}, {t0}, {t1}\ns_mul_i32 {t1}, {hg}, 320\ns_add_u32 {t0}, {t0}, {t1}")
    a("s_waitcnt lgkmcnt(0)")
    srd(a, rw, 'wqkv', 0, 640*1920*2); srd(a, rf, 'ws', WS_WQF, SZ_WQF)
    a(f"s_cmp_eq_u32 {wv}, 3\ns_cbranch_scc1 Lwq_noload")
    a(f"s_mul_i32 {t1}, {wv}, 5120")
    for i in range(5):
        a(f"s_add_u32 m0, {t1}, {1024*i}")
        a(f"buffer_load_dwordx4 {off[i]}, {rw}, {t0} offen lds")
    a("Lwq_noload:")
    q, kr = V(), V()
    a(f"v_bfe_u32 {q}, {lane}, 4, 1\nv_and_b32 {t}, 3, {lane}\nv_lshl_add_u32 {q}, {q}, 2, {t}\nv_lshlrev_b32 {q}, 2, {q}")
    a(f"v_lshrrev_b32 {kr}, 5, {lane}\nv_bfe_u32 {t}, {lane}, 2, 2\nv_lshl_add_u32 {kr}, {kr}, 3, {t}\nv_mul_u32_u24 {kr}, 320, {kr}")
    a(f"s_mul_i32 {t1}, {wv}, 80\nv_add_u32 {kr}, {t1}, {kr}")
    ad = {}
    for par in range(2):
        Q = wq_quads(par)
        for tl in range(2):
            r = V(); ad[par, tl] = r
            a(f"s_mov_b32 {t1}, {nib([x[0] for x in Q[8*tl:8*tl+8]]):#x}\nv_bfe_u32 {t}, {t1}, {q}, 4")
            a(f"s_mov_b32 {t1}, {nib([x[1] for x in Q[8*tl:8*tl+8]]):#x}\nv_bfe_u32 {u}, {t1}, {q}, 4")
            a(f"v_mul_u32_u24 {t}, 5120, {t}\nv_lshl_add_u32 {t}, {u}, 3, {t}\nv_add_u32 {r}, {t}, {kr}")
    vo = V()
    a(f"v_lshlrev_b32 {vo}, 4, {lane}")
    a(f"s_lshl_b32 {t0}, {hg}, 2\ns_add_u32 {t0}, {t0}, {wv}\ns_mul_i32 {t0}, {t0}, {2*81920}\ns_lshl_b32 {t1}, {ks}, 11\ns_add_u32 {t0}, {t0}, {t1}")
    a(f"s_add_u32 {t1}, {t0}, 81920")
    a("s_waitcnt vmcnt(0)\ns_barrier")
    fr = {}
    for par in range(2):
        for tl in range(2):
            f = V(4); fr[par, tl] = f
            for uu in range(2): a(f"ds_read_b64_tr_b16 {f[2*uu:2*uu+2]}, {ad[par,tl]} offset:{par*40 + uu*1280}")
    for par in range(2):
        for tl in range(2):
            a(f"buffer_store_dwordx4 {fr[par,tl]}, {vo}, {rf}, {(t0,t1)[par]} offen offset:{1024*tl}")
    a("s_waitcnt vmcnt(0)" if DIAG else ""); T.flush()
    a("s_endpgm")
    return V.hi

def role_wn(a, sid):
    T = Stamps(a, 0); T()
    S = Alloc('s', 40, 100); V = Alloc('v', 1, 128)
    rw, rf = S(4), S(4)
    ks, hf, wv, t0, t1, nk = S(), S(), S(), S(), S(), S()
    lane, t, u = V(), V(), V()
    a(f"s_lshr_b32 {ks}, {sid}, 1\ns_and_b32 {hf}, {sid}, 1")
    a(f"v_lshrrev_b32 {t}, 6, v0\nv_and_b32 {lane}, 63, v0\nv_readfirstlane_b32 {wv}, {t}")
    off = [V() for _ in range(5)]
    for i in range(5):
        a(f"v_add_u32 {t}, {64*i}, {lane}")
        a(f"v_mul_u32_u24 {u}, 1639, {t}\nv_lshrrev_b32 {u}, 16, {u}")
        a(f"v_mul_u32_u24 {off[i]}, {1280-640}, {u}\nv_lshl_add_u32 {off[i]}, {t}, 4, {off[i]}")
    a("s_waitcnt lgkmcnt(0)")
    a(f"s_cmp_lt_u32 {ks}, 20\ns_cbranch_scc0 Lwn_wd")
    srd(a, rw, 'wo', 0, SZ_WOF); srd(a, rf, 'ws', WS_WOF, SZ_WOF); a(f"s_mov_b32 {nk}, 20\ns_branch Lwn_go")
    a("Lwn_wd:")
    srd(a, rw, 'wd', 0, SZ_WDF); srd(a, rf, 'ws', WS_WDF, SZ_WDF); a(f"s_mov_b32 {nk}, 54\ns_sub_u32 {ks}, {ks}, 20")
    a("Lwn_go:")
    a(f"s_lshl_b32 {t0}, {ks}, 2\ns_add_u32 {t0}, {t0}, {wv}\ns_mul_i32 {t0}, {t0}, {8*1280}\ns_mul_i32 {t1}, {hf}, 640\ns_add_u32 {t0}, {t0}, {t1}")
    a(f"s_mul_i32 {t1}, {wv}, 5120")
    for i in range(5):
        a(f"s_add_u32 m0, {t1}, {1024*i}")
        a(f"buffer_load_dwordx4 {off[i]}, {rw}, {t0} offen lds")
    a0, a1, kr = V(), V(), V()
    a(f"v_lshrrev_b32 {kr}, 4, {lane}\nv_bfe_u32 {t}, {lane}, 2, 2\nv_lshl_add_u32 {kr}, {kr}, 3, {t}\nv_mul_u32_u24 {kr}, 640, {kr}")
    a(f"s_mul_i32 {t1}, {wv}, 160\nv_add_u32 {kr}, {t1}, {kr}\nv_and_b32 {t}, 3, {lane}")
    a(f"v_lshl_add_u32 {a0}, {t}, 4, {kr}\nv_lshl_add_u32 {a1}, {t}, 3, {kr}")
    vo = V()
    a(f"v_lshlrev_b32 {vo}, 4, {lane}")
    a(f"s_lshl_b32 {t0}, {hf}, 2\ns_add_u32 {t0}, {t0}, {wv}\ns_mul_i32 {t0}, {t0}, {nk}\ns_add_u32 {t0}, {t0}, {ks}\ns_mul_i32 {t0}, {t0}, 5120")
    a(f"s_add_u32 {t1}, {t0}, 4096")
    a("s_waitcnt vmcnt(0)\ns_barrier")
    fr = [V(4) for _ in range(5)]
    for tl in range(5):
        for uu in range(2):
            o = (64*(tl >> 1) + 8*(tl & 1) if tl < 4 else 128) + uu*4*640
            a(f"ds_read_b64_tr_b16 {fr[tl][2*uu:2*uu+2]}, {a0 if tl<4 else a1} offset:{o}")
    for tl in range(5):
        a(f"buffer_store_dwordx4 {fr[tl]}, {vo}, {rf}, {t0 if tl<4 else t1} offen offset:{1024*(tl&3)}")
    a("s_waitcnt vmcnt(0)" if DIAG else ""); T.flush()
    a("s_endpgm")
    return V.hi


def modvec_load(a, V, rmp, voff, st, col_scale, col_shift):
    r = [[V(2) for _ in range(4)] for _ in range(2)]
    for vi, col in enumerate((col_scale, col_shift)):
        for p in range(4):
            a(f"s_mov_b32 {st}, {p*15360 + col*4}")
            a(f"buffer_load_dwordx2 {r[vi][p]}, {voff}, {rmp}, {st} offen")
    return r
def modvec_finish(a, r, vaddr, ldsoff):
    for vi in range(2):
        x = r[vi]
        a(f"v_pk_add_f32 {x[0]}, {x[0]}, {x[1]}\nv_pk_add_f32 {x[2]}, {x[2]}, {x[3]}\nv_pk_add_f32 {x[0]}, {x[0]}, {x[2]}")
        a(f"v_cvt_pk_bf16_f32 {x[0][0]}, {x[0][0]}, {x[0][1]}")
        if vi == 0:
            a(f"v_and_b32 {x[0][1]}, 0xffff0000, {x[0][0]}\nv_lshlrev_b32 {x[0][0]}, 16, {x[0][0]}")
            a(f"v_add_f32 {x[0][0]}, 1.0, {x[0][0]}\nv_add_f32 {x[0][1]}, 1.0, {x[0][1]}")
            a(f"v_cvt_pk_bf16_f32 {x[0][0]}, {x[0][0]}, {x[0][1]}")
        a(f"ds_write_b32 {vaddr}, {x[0][0]} offset:{ldsoff + 256*vi}")
def scale_ops(frags, baccs, first, sp, sap, msk, tmp, csum=None, one=None):
    o = []
    for i in range(4):
        o.append(f"v_and_b32 {msk[2*i]}, 0xffff, {sp[i]}")
        o.append(f"v_and_b32 {msk[2*i+1]}, 0xffff0000, {sp[i]}")
    for fi, f in enumerate(frags):
        for i in range(4):
            o.append(f"v_dot2_f32_bf16 {tmp[2*i]}, {f[i]}, {msk[2*i]}, 0")
            o.append(f"v_dot2_f32_bf16 {tmp[2*i+1]}, {f[i]}, {msk[2*i+1]}, 0")
        for i in range(4):
            o.append(f"v_dot2_f32_bf16 {baccs[fi]}, {f[i]}, {sap[i]}, {0 if (first and i == 0) else baccs[fi]}")
        for i in range(4):
            o.append(f"v_cvt_pk_bf16_f32 {f[i]}, {tmp[2*i]}, {tmp[2*i+1]}")
        if csum is not None:
            for i in range(4):
                o.append(f"v_dot2_f32_bf16 {csum[fi]}, {f[i]}, {one}, {0 if (first and i == 0) else csum[fi]}")
    return o

NEG = f2u(-1e30)
QSCALE = f2u(20**-0.5 * 1.4426950408889634)
L_WP, L_KV, L_MV, L_BP, L_BF, L_K1END = 0, 81920, 131072, 135168, 137216, 139264
def gen_k1():
    a = Asm()
    S = Alloc('s', 40, 100); V = Alloc('v', 1, 256)
    load_args(a)
    a("s_cmp_ge_u32 s2, 256\ns_cbranch_scc1 Lk1_end")
    T = Stamps(a, 1); T()
    rmp, rwq, rxf, rkv, rfl, rof, rmod = S(4), S(4), S(4), S(4), S(4), S(4), S(4)
    blk, head, wv, st, st2, sxo, swo, hm = S(), S(), S(), S(), S(), S(), S(), S(2)
    lane, l16, t, u, vmv, vmr = V(), V(), V(), V(), V(), V()
    a(f"s_bfe_u32 {blk}, s2, 0x20001\ns_lshl_b32 {blk}, {blk}, 1\ns_lshr_b32 {st}, s2, 7\ns_add_u32 {blk}, {blk}, {st}")
    a(f"s_and_b32 {head}, s2, 1\ns_lshl_b32 {head}, {head}, 4\ns_bfe_u32 {st}, s2, 0x40003\ns_add_u32 {head}, {head}, {st}")
    a(f"v_lshrrev_b32 {t}, 6, v0\nv_and_b32 {lane}, 63, v0\nv_readfirstlane_b32 {wv}, {t}")
    a(f"v_lshlrev_b32 {l16}, 4, {lane}")
    vmo = V()
    a(f"v_lshrrev_b32 {u}, 3, {lane}\nv_lshlrev_b32 {vmo}, 9, {u}\nv_and_b32 {u}, 7, {lane}\nv_lshl_add_u32 {vmo}, {u}, 3, {vmo}\nv_lshl_add_u32 {vmo}, {t}, 6, {vmo}")
    a(f"v_lshlrev_b32 {vmv}, 9, {t}\nv_lshrrev_b32 {u}, 5, {lane}\nv_lshl_add_u32 {vmr}, {u}, 4, {vmv}\nv_lshl_add_u32 {vmv}, {lane}, 2, {vmv}")
    a(f"v_add_u32 {vmr}, {L_MV}, {vmr}\nv_add_u32 {vmv}, {L_MV}, {vmv}")
    a(f"s_mov_b32 {hm[0]}, 0\ns_mov_b32 {hm[1]}, -1")
    a(f"s_lshl_b32 {sxo}, {blk}, 3\ns_add_u32 {sxo}, {sxo}, {wv}\ns_mul_i32 {sxo}, {sxo}, 40960")
    a(f"s_mul_i32 {swo}, {head}, 81920\ns_lshl_b32 {st}, {wv}, 11\ns_add_u32 {swo}, {swo}, {st}")
    a("s_waitcnt lgkmcnt(0)")
    srd(a, rmp, 'ws', WS_MODP, SZ_MODP); srd(a, rwq, 'ws', WS_WQF, SZ_WQF); srd(a, rxf, 'ws', WS_XF, SZ_ACT16)
    X = [V(32) for _ in range(3)]
    raw = [V(8) for _ in range(2)]
    acc = V(32); wp = [V(8) for _ in range(2)]
    sp, sap, msk, tmp, bacc = V(4), V(4), V(8), V(8), V(2)
    mp = modvec_load(a, V, rmp, vmo, st, 640, 0)
    def ld_w(r):
        return [[f"s_add_u32 {st2}, {swo}, {r*16384}", f"buffer_load_dwordx4 {raw[r&1][0:4]}, {l16}, {rwq}, {st2} offen"],
                [f"buffer_load_dwordx4 {raw[r&1][4:8]}, {l16}, {rwq}, {st2} offen offset:1024"]]
    def ld_x(r):
        o = []
        for s_ in range(8):
            g = []
            if s_ % 4 == 0: g.append(f"s_add_u32 {st2}, {sxo}, {(8*r+s_)*1024}")
            g.append(f"buffer_load_dwordx4 {X[r%3][4*s_:4*s_+4]}, {l16}, {rxf}, {st2} offen offset:{(s_%4)*1024}")
            o.append(g)
        return o
    for g in ld_w(0) + ld_x(0) + ld_w(1): a('\n'.join(g))
    srd(a, rkv, 'ws', WS_KV, SZ_KV); srd(a, rfl, 'ws', WS_FLAG, SZ_FLAG); srd(a, rof, 'ws', WS_OF, SZ_ACT16); srd(a, rmod, 'ws', WS_MOD, SZ_MOD)
    modvec_finish(a, mp, vmv, 0)
    for x in mp: V.release(*x)
    V.release(vmo)
    vww = V()
    a(f"v_lshl_add_u32 {vww}, {t}, 11, {l16}")
    vw2 = V()
    a(f"v_add_u32 {vw2}, 65536, {l16}")
    def scale_round(r):
        o = [f"ds_read_b128 {sp}, {vmr} offset:{32*r}", f"ds_read_b128 {sap}, {vmr} offset:{256 + 32*r}"]
        o += scale_ops([raw[r&1][0:4], raw[r&1][4:8]], [bacc[0], bacc[1]], r == 0, sp, sap, msk, tmp)
        if r < 4:
            o += [f"ds_write_b128 {vww}, {raw[r&1][0:4]} offset:{r*16384}", f"ds_write_b128 {vww}, {raw[r&1][4:8]} offset:{r*16384+1024}"]
        else:
            o += [f"v_add_u32 {vww}, 65536, {vww}", f"ds_write_b128 {vww}, {raw[r&1][0:4]}", f"ds_write_b128 {vww}, {raw[r&1][4:8]} offset:1024"]
        return o
    for l in interleave([[x] for x in scale_round(0)], ld_x(1)): a(l)
    def rd_w(ks):
        base, off = (l16, ks*2048) if ks < 32 else (vw2, (ks-32)*2048)
        return [f"ds_read_b128 {wp[ks&1][0:4]}, {base} offset:{off}", f"ds_read_b128 {wp[ks&1][4:8]}, {base} offset:{off+1024}"]
    bias = X[0]
    vbp, vbf = V(), V()
    for r in range(5):
        a("s_waitcnt lgkmcnt(0)\ns_barrier")
        if r in (0, 2): T()
        a('\n'.join(rd_w(8*r)))
        main = []
        for s_ in range(8):
            ks = 8*r + s_
            g = rd_w(ks+1) if s_ < 7 else []
            for tl in range(2):
                c = acc[16*tl:16*tl+16]
                m = f"v_mfma_f32_32x32x16_bf16 {c}, {wp[ks&1][4*tl:4*tl+4]}, {X[r%3][4*s_:4*s_+4]}, {c if ks else 0}"
                main.append(g + [m] if tl == 0 else [m])
        fill = []
        if r < 3:
            fill = interleave([[x] for x in scale_round(r+1)], ld_x(r+2)[:0])
            lds_ = ld_w(r+2) + ld_x(r+2)
            fill = [[x] for x in fill]
            fill = interleave_items(fill, lds_)
        elif r == 3:
            fill = [[x] for x in scale_round(4)]
            fill += [[f"v_permlane32_swap_b32 {bacc[0]}, {bacc[1]}"], [f"v_add_f32 {bacc[0]}, {bacc[0]}, {bacc[1]}"],
                     [f"v_lshlrev_b32 {vbp}, 2, v0"], [f"v_add_u32 {vbp}, {L_BP}, {vbp}"], [f"ds_write_b32 {vbp}, {bacc[0]}"]]
        else:
            fill = [[f"v_lshlrev_b32 {vbf}, 2, {lane}"], [f"v_add_u32 {vbf}, {L_BP}, {vbf}"]]
            fill += [[f"ds_read_b32 {tmp[i]}, {vbf} offset:{256*i}"] for i in range(8)]
            fill += [[f"v_add_f32 {tmp[i]}, {tmp[i]}, {tmp[i+4]}"] for i in range(4)]
            fill += [[f"v_add_f32 {tmp[i]}, {tmp[i]}, {tmp[i+2]}"] for i in range(2)]
            fill += [[f"v_add_f32 {tmp[0]}, {tmp[0]}, {tmp[1]}"], [f"ds_write_b32 {vbp}, {tmp[0]} offset:{L_BF-L_BP}"]]
            fill += [[f"v_lshrrev_b32 {vbf}, 5, {lane}"], [f"v_lshlrev_b32 {vbf}, 4, {vbf}"], [f"v_lshl_add_u32 {vbf}, {t}, 8, {vbf}"], [f"v_add_u32 {vbf}, {L_BF}, {vbf}"]]
            fill += [[f"ds_read_b128 {bias[4*G:4*G+4]}, {vbf} offset:{32*G}"] for G in range(8)]
        for l in interleave(main, fill): a(l)
    T()
    V.release(*wp, *raw, sp, sap, msk, tmp, bacc, vww, vw2, vbp, vbf, vmv, vmr, X[1], X[2])
    Pk = V(16); Q1 = V(2); K1 = V(2); Vt = V(2); cq = V(2); cq2 = V(2); c1 = V()
    vk0, vk1, vv0, vv1 = V(), V(), V(), V()
    a(f"s_mul_i32 {st}, {wv}, 3072\ns_add_u32 {st}, {st}, {L_KV}")
    a(f"v_add_u32 {vk0}, {st}, {l16}")
    a(f"v_lshl_add_u32 {vk1}, {lane}, 3, {st}")
    a(f"v_and_b32 {u}, 31, {lane}\nv_mul_u32_u24 {vv0}, 48, {u}\nv_add_u32 {vv0}, {st}, {vv0}\nv_lshrrev_b32 {u}, 5, {lane}")
    a(f"v_lshlrev_b32 {vv1}, 3, {u}\nv_sub_u32 {vv1}, {vv0}, {vv1}\nv_lshl_add_u32 {vv0}, {u}, 4, {vv0}")
    a(f"v_mov_b32 {cq[0]}, {QSCALE:#x}\nv_cndmask_b32 {cq2[0]}, {cq[0]}, 1.0, {hm}\nv_mov_b32 {c1}, 0x3f80")
    for j in range(16): a(f"v_pk_add_f32 {acc[2*j:2*j+2]}, {acc[2*j:2*j+2]}, {bias[2*j:2*j+2]}")
    for j in range(6): a(f"v_pk_mul_f32 {acc[2*j:2*j+2]}, {acc[2*j:2*j+2]}, {cq if j<4 else cq2} op_sel_hi:[1,0]")
    for j in list(range(6, 16)) + list(range(6)): a(f"v_cvt_pk_bf16_f32 {Pk[j]}, {acc[2*j]}, {acc[2*j+1]}")
    OWN = 8*3072
    a(f"ds_write_b128 {vk0}, {Pk[6:10]} offset:{OWN}")
    a(f"ds_write_b128 {vv0}, {Pk[12:16]} offset:{OWN+1536}")
    a(f"v_cndmask_b32 {K1[0]}, {Pk[10]}, 0, {hm}\nv_cndmask_b32 {K1[1]}, {Pk[11]}, 0, {hm}")
    a(f"v_cndmask_b32 {Vt[0]}, {c1}, {Pk[4]}, {hm}\nv_cndmask_b32 {Vt[1]}, 0, {Pk[5]}, {hm}")
    a(f"ds_write_b64 {vk1}, {K1} offset:{OWN+1024}")
    a(f"ds_write_b64 {vv1}, {Vt} offset:{OWN+1536+40}")
    a(f"v_cndmask_b32 {Q1[0]}, {Pk[4]}, {c1}, {hm}\nv_cndmask_b32 {Q1[1]}, {Pk[5]}, 0, {hm}")
    Q0 = Pk[0:4]
    pub = bias[0:12]
    for i in range(3): a(f"ds_read_b128 {pub[4*i:4*i+4]}, {vk0} offset:{OWN+1024*i}")
    sid, skv, sfl = S(), S(), S()
    a(f"s_lshl_b32 {sid}, {blk}, 5\ns_add_u32 {sid}, {sid}, {head}")
    a(f"s_lshl_b32 {skv}, {sid}, 3\ns_add_u32 {skv}, {skv}, {wv}\ns_mul_i32 {skv}, {skv}, 3072")
    a(f"s_lshl_b32 {sfl}, {sid}, 7\ns_lshl_b32 {st2}, {wv}, 2\ns_add_u32 {sfl}, {sfl}, {st2}")
    for i in range(3): a(f"buffer_store_dwordx4 {pub[4*i:4*i+4]}, {l16}, {rkv}, {skv} offen offset:{1024*i} sc1")
    V.release(acc, K1, Vt, cq, cq2, vv0, vv1)
    Sx = [V(16) for _ in range(9)]
    cm = S(2); vneg = V()
    a(f"v_and_b32 {t}, 31, {lane}\nv_lshrrev_b32 {u}, 5, {lane}\nv_lshlrev_b32 {u}, 2, {u}\nv_sub_u32 {t}, {t}, {u}\nv_mov_b32 {vneg}, {NEG:#x}")
    for r in range(16):
        cr = (r & 3) + 8*(r >> 2)
        a(f"v_cmp_gt_i32 {cm}, {cr}, {t}")
        a(f"v_cndmask_b32 {Sx[0][r]}, {vneg}, 0, {cm}\nv_cndmask_b32 {Sx[8][r]}, 0, {vneg}, {cm}")
    z = V(); one = V()
    a(f"v_mov_b32 {z}, 0\nv_mov_b32 {one}, 1")
    a("s_waitcnt vmcnt(0)")
    a(f"buffer_store_dword {one}, {z}, {rfl}, {sfl} offen sc1")
    T()
    a("s_cmp_lt_u32 s2, 8\ns_cbranch_scc0 Lk1_nomod\n@save")
    a(f"s_lshl_b32 {st}, s2, 11\nv_lshl_add_u32 {u}, v0, 2, {st}")
    for p in range(4):
        a(f"s_mov_b32 {st}, {p*15360}\nbuffer_load_dword {pub[p]}, {u}, {rmp}, {st} offen")
    a(f"v_add_f32 {pub[0]}, {pub[0]}, {pub[1]}\nv_add_f32 {pub[2]}, {pub[2]}, {pub[3]}\nv_add_f32 {pub[0]}, {pub[0]}, {pub[2]}")
    a(f"v_cvt_pk_bf16_f32 {pub[0]}, 0, {pub[0]}")
    a(f"buffer_store_dword {pub[0]}, {u}, {rmod}, 0 offen\ns_waitcnt vmcnt(0)\n@restore")
    a("Lk1_nomod:")
    a(f"s_cmp_eq_u32 {blk}, 0\ns_cbranch_scc1 Lk1_first")
    a(f"s_sub_u32 {skv}, {skv}, {32*8*3072}\ns_sub_u32 {sfl}, {sfl}, {32*128}\ns_mov_b32 {st2}, 0")
    a("Lk1_poll:")
    a(f"buffer_load_dword {one}, {z}, {rfl}, {sfl} offen sc1\ns_waitcnt vmcnt(0)\nv_readfirstlane_b32 {st}, {one}")
    a(f"s_add_u32 {st2}, {st2}, 1\ns_cmp_gt_u32 {st2}, 0x40000\ns_cbranch_scc1 Lk1_got")
    a(f"s_cmp_eq_u32 {st}, 1\ns_cbranch_scc0 Lk1_poll")
    a("Lk1_got:")
    for i in range(3): a(f"buffer_load_dwordx4 {pub[4*i:4*i+4]}, {l16}, {rkv}, {skv} offen offset:{1024*i} sc1")
    a("s_waitcnt vmcnt(0)\ns_branch Lk1_wr")
    a("Lk1_first:")
    for i in range(12): a(f"v_mov_b32 {pub[i]}, 0")
    a(f"s_mov_b32 {cm[0]}, 0xffff0000\ns_mov_b32 {cm[1]}, 0\nv_mov_b32 {u}, {NEG>>16:#x}")
    a(f"v_cndmask_b32 {pub[4]}, 0, {u}, {cm}\nv_cndmask_b32 {pub[6]}, 0, {u}, {cm}")
    a("Lk1_wr:\n@reset")
    for i in range(3): a(f"ds_write_b128 {vk0}, {pub[4*i:4*i+4]} offset:{1024*i}")
    vtr = V()
    a(f"v_lshrrev_b32 {t}, 5, {lane}\nv_bfe_u32 {u}, {lane}, 2, 2\nv_lshl_add_u32 {t}, {t}, 2, {u}\nv_mul_u32_u24 {vtr}, 48, {t}")
    a(f"v_bfe_u32 {t}, {lane}, 4, 1\nv_and_b32 {u}, 3, {lane}\nv_lshl_add_u32 {t}, {t}, 2, {u}\nv_lshlrev_b32 {t}, 2, {t}")
    a(f"s_mov_b32 {st2}, {nib([0,2,1,3,4,5,5,5]):#x}\nv_bfe_u32 {t}, {st2}, {t}, 4\nv_lshl_add_u32 {vtr}, {t}, 3, {vtr}")
    a(f"s_mul_i32 {st}, {wv}, 3072\ns_add_u32 {st}, {st}, {L_KV+1536}\nv_add_u32 {vtr}, {st}, {vtr}")
    a("s_waitcnt lgkmcnt(0)\ns_barrier")
    T()
    kf = [bias[6*i:6*i+6] for i in range(4)]
    def rd_k(tl): return [f"ds_read_b128 {kf[tl%4][0:4]}, {vk0} offset:{tl*3072}", f"ds_read_b64 {kf[tl%4][4:6]}, {vk1} offset:{tl*3072+1024}"]
    mx = V(2)
    def max_ops(tl):
        o = []
        for j in range(8):
            m = mx[j & 1]
            if tl == 0 and j < 2: o.append(f"v_max_f32 {m}, {Sx[tl][2*j]}, {Sx[tl][2*j+1]}")
            else: o.append(f"v_max3_f32 {m}, {Sx[tl][2*j]}, {Sx[tl][2*j+1]}, {m}")
        return o
    a('\n'.join(rd_k(0) + rd_k(1) + rd_k(2)))
    for tl in range(9):
        if tl + 3 < 9: a('\n'.join(rd_k(tl+3)))
        c = Sx[tl] if tl in (0, 8) else 0
        mo = max_ops(tl-2) if tl >= 2 else []
        a(f"v_mfma_f32_32x32x16_bf16 {Sx[tl]}, {kf[tl%4][0:4]}, {Q0}, {c}")
        a('\n'.join(mo[:4]))
        a(f"v_mfma_f32_32x32x8bf16_1k {Sx[tl]}, {kf[tl%4][4:6]}, {Q1}, {Sx[tl]}")
        a('\n'.join(mo[4:]))
    vf = [bias[8*i:8*i+8] for i in range(3)]
    def rd_v(tl): return [f"ds_read_b64_tr_b16 {vf[tl%3][2*q:2*q+2]}, {vtr} offset:{tl*3072 + q*8*48}" for q in range(4)]
    a('\n'.join(max_ops(7)))
    a('\n'.join(rd_v(0) + rd_v(1)))
    a('\n'.join(max_ops(8)))
    a(f"v_max_f32 {mx[0]}, {mx[0]}, {mx[1]}\nv_mov_b32 {mx[1]}, {mx[0]}\nv_permlane32_swap_b32 {mx[0]}, {mx[1]}\nv_max_f32 {mx[0]}, {mx[0]}, {mx[1]}")
    O = V(16)
    def pv(tl): return [f"v_mfma_f32_32x32x16_bf16 {O}, {vf[tl%3][4*s_:4*s_+4]}, {Sx[tl][4*s_:4*s_+4]}, {O if (tl or s_) else 0}" for s_ in range(2)]
    for tl in range(9):
        s_ = Sx[tl]
        ops = [f"v_pk_add_f32 {s_[2*j:2*j+2]}, {s_[2*j:2*j+2]}, {mx} op_sel_hi:[1,0] neg_lo:[0,1] neg_hi:[0,1]" for j in range(8)]
        ops += [f"v_exp_f32 {s_[j]}, {s_[j]}" for j in range(16)]
        ops += [f"v_cvt_pk_bf16_f32 {s_[j]}, {s_[2*j]}, {s_[2*j+1]}" for j in range(8)]
        if tl >= 1:
            p = pv(tl-1); ops.insert(4, p[0]); ops.insert(14, p[1])
            if tl + 1 < 9: ops[18:18] = rd_v(tl+1)
        a('\n'.join(ops))
    a('\n'.join(pv(8)))
    vo = V()
    a(f"v_bfe_u32 {t}, {lane}, 4, 1\nv_mul_u32_u24 {vo}, 20480, {t}\nv_and_b32 {u}, 15, {lane}\nv_lshl_add_u32 {vo}, {u}, 4, {vo}")
    a(f"v_lshrrev_b32 {u}, 5, {lane}\nv_lshl_add_u32 {t}, {u}, 8, {vo}")
    a(f"s_lshr_b32 {st}, {head}, 1\ns_mul_i32 {st}, {st}, 1280\ns_add_u32 {st}, {st}, {sxo}\ns_and_b32 {sid}, {head}, 1")
    a(f"s_lshl_b32 {st2}, {sid}, 3\ns_add_u32 {st2}, {st2}, {st}\ns_mul_i32 {sid}, {sid}, 768\ns_add_u32 {st}, {st}, {sid}")
    a(f"v_rcp_f32 {mx[0]}, {O[12]}")
    for j in range(6): a(f"v_pk_mul_f32 {O[2*j:2*j+2]}, {O[2*j:2*j+2]}, {mx} op_sel_hi:[1,0]")
    for j in range(6): a(f"v_cvt_pk_bf16_f32 {O[j]}, {O[2*j]}, {O[2*j+1]}")
    a(f"buffer_store_dwordx4 {O[0:4]}, {t}, {rof}, {st} offen")
    a(f"s_mov_b32 exec_hi, 0")
    a(f"buffer_store_dwordx2 {O[4:6]}, {vo}, {rof}, {st2} offen offset:512")
    T(); a("s_waitcnt vmcnt(0)" if DIAG else ""); T.flush()
    a("Lk1_end:\ns_endpgm")
    return dict(name='k1_kernel', lines=finish(a), vgpr=V.hi, agpr=0, grid=256, block=512, lds=L_K1END)

def interleave_items(a_items, b_items):
    out = []; n = len(a_items); m = len(b_items); k = 0
    for i, g in enumerate(a_items):
        out.append(g)
        tgt = (i + 1) * m // n
        while k < tgt: out.append(b_items[k]); k += 1
    return out


def role_wg(a, sid):
    T = Stamps(a, 2); T()
    S = Alloc('s', 60, 100); V = Alloc('v', 1, 128)
    rw, rf, rmp, rup = S(4), S(4), S(4), S(4)
    ksp, cgp, wv, t0, t1 = S(), S(), S(), S(), S()
    lane, t, u, voff, vmo, vmv, vmr = V(), V(), V(), V(), V(), V(), V()
    a(f"s_and_b32 {ksp}, {sid}, 7\ns_lshr_b32 {cgp}, {sid}, 3")
    a(f"v_lshrrev_b32 {t}, 6, v0\nv_and_b32 {lane}, 63, v0\nv_readfirstlane_b32 {wv}, {t}")
    a(f"v_lshrrev_b32 {u}, 3, {lane}\nv_mul_u32_u24 {voff}, 3456, {u}\nv_and_b32 {u}, 7, {lane}\nv_lshl_add_u32 {voff}, {u}, 4, {voff}")
    a(f"s_mul_i32 {t0}, {ksp}, 320\nv_lshl_add_u32 {vmo}, {lane}, 3, {t0}")
    LMV = 20480
    a(f"v_lshlrev_b32 {vmv}, 9, {t}\nv_lshrrev_b32 {u}, 5, {lane}\nv_lshl_add_u32 {vmr}, {u}, 4, {vmv}\nv_lshl_add_u32 {vmv}, {lane}, 2, {vmv}")
    a("s_waitcnt lgkmcnt(0)")
    a(f"s_cmp_lt_u32 {wv}, 2\ns_cselect_b32 {rw[0]}, s{P['wg']}, s{P['wu']}\ns_cselect_b32 {rw[1]}, s{P['wg']+1}, s{P['wu']+1}")
    a(f"s_mov_b32 {rw[2]}, {640*1728*2:#x}\ns_mov_b32 {rw[3]}, 0x20000")
    a(f"s_and_b32 {t1}, {wv}, 1\ns_mul_i32 {t1}, {t1}, {40*3456}\ns_mul_i32 {t0}, {ksp}, {80*3456}\ns_add_u32 {t0}, {t0}, {t1}\ns_lshl_b32 {t1}, {cgp}, 7\ns_add_u32 {t0}, {t0}, {t1}")
    a(f"s_mul_i32 {t1}, {wv}, 5120")
    for i in range(5):
        a(f"s_add_u32 m0, {t1}, {1024*i}")
        a(f"buffer_load_dwordx4 {voff}, {rw}, {t0} offen lds")
        if i < 4: a(f"s_add_u32 {t0}, {t0}, {8*3456}")
    srd(a, rmp, 'ws', WS_MODP, SZ_MODP)
    mp = modvec_load(a, V, rmp, vmo, t0, 4*640, 3*640)
    srd(a, rf, 'ws', WS_WGF, SZ_WGF); srd(a, rup, 'ws', WS_UP, SZ_UP)
    vtr, vo, one = V(), V(), V()
    a(f"v_lshrrev_b32 {t}, 5, {lane}\nv_bfe_u32 {u}, {lane}, 2, 2\nv_lshl_add_u32 {t}, {t}, 3, {u}\nv_lshlrev_b32 {vtr}, 7, {t}")
    a(f"v_bfe_u32 {t}, {lane}, 4, 1\nv_mul_u32_u24 {t}, 10240, {t}\nv_add_u32 {vtr}, {vtr}, {t}")
    a(f"v_and_b32 {t}, 1, {lane}\nv_lshl_add_u32 {vtr}, {t}, 4, {vtr}\nv_bfe_u32 {t}, {lane}, 1, 1\nv_lshl_add_u32 {vtr}, {t}, 3, {vtr}")
    a(f"s_lshl_b32 {t1}, {wv}, 5\nv_add_u32 {vtr}, {t1}, {vtr}")
    a(f"v_lshlrev_b32 {vo}, 4, {lane}\nv_mov_b32 {one}, {ONES_BF:#x}")
    modvec_finish(a, mp, vmv, LMV)
    a("s_waitcnt vmcnt(0)\ns_barrier")
    fr = [V(4) for _ in range(5)]; sp = [V(4) for _ in range(5)]; sap = [V(4) for _ in range(5)]
    msk, tmp, acc = V(8), V(8), V(2)
    for k in range(5):
        for uu in range(2): a(f"ds_read_b64_tr_b16 {fr[k][2*uu:2*uu+2]}, {vtr} offset:{(16*k+4*uu)*128}")
        a(f"ds_read_b128 {sp[k]}, {vmr} offset:{LMV+32*k}\nds_read_b128 {sap[k]}, {vmr} offset:{LMV+256+32*k}")
    a(f"s_lshl_b32 {t0}, {cgp}, 2\ns_add_u32 {t0}, {t0}, {wv}\ns_mul_i32 {t1}, {ksp}, 108\ns_add_u32 {t1}, {t1}, {t0}\ns_lshl_b32 {t1}, {t1}, 8")
    a(f"s_mul_i32 {t0}, {t0}, 40960\ns_mul_i32 {cgp}, {ksp}, 5120\ns_add_u32 {t0}, {t0}, {cgp}\ns_add_u32 {cgp}, {t0}, 4096")
    for k in range(5):
        a('\n'.join(scale_ops([fr[k]], [acc[1]], k == 0, sp[k], sap[k], msk, tmp, [acc[0]], one)))
        a(f"buffer_store_dwordx4 {fr[k]}, {vo}, {rf}, {t0 if k<4 else cgp} offen offset:{1024*(k&3)}")
    a(f"v_permlane32_swap_b32 {acc[0]}, {acc[1]}\nv_add_f32 {acc[0]}, {acc[0]}, {acc[1]}\nv_lshlrev_b32 {vo}, 2, {lane}")
    a(f"buffer_store_dword {acc[0]}, {vo}, {rup}, {t1} offen")
    a("s_waitcnt vmcnt(0)" if DIAG else ""); T.flush()
    a("s_endpgm")
    return V.hi

def gen_narrow(name, NK, kind):
    a = Asm()
    S = Alloc('s', 40, 100); V = Alloc('v', 1, 256)
    load_args(a)
    extra = 216 if kind == 'wo' else 0
    a(f"s_cmp_ge_u32 s2, 256\ns_cbranch_scc1 L{name}_other")
    T = Stamps(a, 2 if kind == 'wo' else 4); T()
    rx, rw, rm, rr, ro, rs = S(4), S(4), S(4), S(4), S(4), S(4)
    rb, cb, wv, st, st2, sxo, swo, slds = S(), S(), S(), S(), S(), S(), S(), S()
    lane, l16, t, u = V(), V(), V(), V()
    a(f"s_bfe_u32 {rb}, s2, 0x20001\ns_lshl_b32 {rb}, {rb}, 3\ns_lshr_b32 {st}, s2, 5\ns_add_u32 {rb}, {rb}, {st}")
    a(f"s_and_b32 {cb}, s2, 1\ns_lshl_b32 {cb}, {cb}, 2\ns_bfe_u32 {st}, s2, 0x20003\ns_add_u32 {cb}, {cb}, {st}")
    a(f"v_lshrrev_b32 {t}, 6, v0\nv_and_b32 {lane}, 63, v0\nv_readfirstlane_b32 {wv}, {t}")
    a(f"v_lshlrev_b32 {l16}, 4, {lane}")
    a(f"s_lshl_b32 {sxo}, {rb}, 2\ns_add_u32 {sxo}, {sxo}, {wv}\ns_mul_i32 {sxo}, {sxo}, {NK*1024}")
    a(f"s_mul_i32 {slds}, {wv}, 5120\ns_mul_i32 {swo}, {cb}, {NK*5120}\ns_add_u32 {swo}, {swo}, {slds}")
    a("s_waitcnt lgkmcnt(0)")
    if kind == 'wo':
        srd(a, rx, 'ws', WS_OF, SZ_ACT16); srd(a, rw, 'ws', WS_WOF, SZ_WOF)
    else:
        srd(a, rx, 'ws', WS_ACTF, SZ_ACTF); srd(a, rw, 'ws', WS_WDF, SZ_WDF)
    D = 3; NSL = 4
    nst = (NK + 3)//4
    X = [V(16) for _ in range(D+1)]
    wf = [V(20) for _ in range(2)]
    acc = V(20)
    def loads(i):
        o = []
        for c in range(5):
            g = []
            if c in (0, 4):
                g += [f"s_add_u32 {st2}, {swo}, {i*20480 + c*1024}", f"s_add_u32 m0, {slds}, {(i%NSL)*20480 + c*1024}"]
            g += [f"@tag w{i}", f"buffer_load_dwordx4 {l16}, {rw}, {st2} offen offset:{(c&3)*1024} lds"]
            o.append(g)
        for k in range(min(4, NK - 4*i)):
            g = [f"s_add_u32 {st2}, {sxo}, {i*4096}"] if k == 0 else []
            g.append(f"buffer_load_dwordx4 {X[i%(D+1)][4*k:4*k+4]}, {l16}, {rx}, {st2} offen offset:{k*1024}")
            o.append(g)
        return o
    for i in range(D):
        for g in loads(i): a('\n'.join(g))
    gm = V(20); xr = V(10); vrm, vrm2, vfr, vfr2, vg, vg2 = V(), V(), V(), V(), V(), V()
    srd(a, rm, 'ws', WS_MOD, SZ_MOD)
    srd(a, rr, 'x' if kind == 'wo' else 'out', 0, SZ_ACT16)
    srd(a, ro, 'ws', WS_X1F, SZ_ACT16)
    if kind == 'wo': srd(a, rs, 'ws', WS_ST2, SZ_ST2)
    srm, sfr, sg = S(), S(), S()
    a(f"v_lshrrev_b32 {t}, 4, {lane}\nv_and_b32 {u}, 15, {lane}")
    a(f"v_mul_u32_u24 {vrm2}, 1280, {u}\nv_lshl_add_u32 {vrm}, {t}, 4, {vrm2}\nv_lshl_add_u32 {vrm2}, {t}, 3, {vrm2}")
    a(f"v_lshlrev_b32 {vfr2}, 4, {u}\nv_lshl_add_u32 {vfr}, {t}, 9, {vfr2}")
    a(f"v_lshlrev_b32 {vg}, 5, {t}\nv_lshlrev_b32 {vg2}, 4, {t}")
    a(f"v_lshrrev_b32 {u}, 1, {t}\nv_lshl_add_u32 {vfr2}, {u}, 9, {vfr2}\nv_and_b32 {u}, 1, {t}\nv_lshl_add_u32 {vfr2}, {u}, 3, {vfr2}")
    a(f"s_lshl_b32 {srm}, {rb}, 2\ns_add_u32 {srm}, {srm}, {wv}\ns_mul_i32 {srm}, {srm}, {16*1280}\ns_mul_i32 {st}, {cb}, 160\ns_add_u32 {srm}, {srm}, {st}")
    a(f"s_lshr_b32 {st}, {wv}, 1\ns_lshl_b32 {sfr}, {rb}, 1\ns_add_u32 {sfr}, {sfr}, {st}\ns_mul_i32 {sfr}, {sfr}, 40960\ns_mul_i32 {st}, {cb}, 5120\ns_add_u32 {sfr}, {sfr}, {st}")
    a(f"s_and_b32 {st}, {wv}, 1\ns_lshl_b32 {st}, {st}, 8\ns_add_u32 {sfr}, {sfr}, {st}")
    a(f"s_mul_i32 {sg}, {cb}, 320\ns_add_u32 {sg}, {sg}, {(2 if kind=='wo' else 5)*2560}")
    sfr2 = S(); a(f"s_add_u32 {sfr2}, {sfr}, 4096")
    epi = [[f"buffer_load_dwordx4 {gm[4*q:4*q+4]}, {vg}, {rm}, {sg} offen offset:{128*(q>>1) + 16*(q&1)}"] for q in range(4)]
    epi.append([f"buffer_load_dwordx4 {gm[16:20]}, {vg2}, {rm}, {sg} offen offset:256"])
    def rowmaj(op, regs): return [[f"buffer_{op}_dwordx4 {regs[0:4]}, {vrm}, {rr}, {srm} offen"], [f"buffer_{op}_dwordx4 {regs[4:8]}, {vrm}, {rr}, {srm} offen offset:64"], [f"buffer_{op}_dwordx2 {regs[8:10]}, {vrm2}, {rr}, {srm} offen offset:128"]]
    def fragmaj(op, regs): return [[f"buffer_{op}_dwordx4 {regs[0:4]}, {vfr}, {ro}, {sfr} offen"], [f"buffer_{op}_dwordx4 {regs[4:8]}, {vfr}, {ro}, {sfr} offen offset:2048"], [f"buffer_{op}_dwordx2 {regs[8:10]}, {vfr2}, {ro}, {sfr2} offen"]]
    epi += rowmaj('load', xr) if kind == 'wo' else fragmaj('load', xr)
    vw2 = V(); a(f"v_add_u32 {vw2}, 40960, {l16}")
    def rd_w(ks):
        i, k = divmod(ks, 4); off = (i % NSL)*20480 + k*5120
        base = l16
        if off >= 40960: base, off = vw2, off - 40960
        return [f"ds_read_b128 {wf[ks&1][4*c:4*c+4]}, {base} offset:{off + c*1024}" for c in range(5)]
    for i in range(nst):
        if i == 0: T()
        a(f"@waitvm w{i}\ns_barrier")
        if i in (0, nst//2): T()
        nk = min(4, NK - 4*i)
        a('\n'.join(rd_w(4*i)))
        main = []
        for k in range(nk):
            ks = 4*i + k
            nx = rd_w(ks+1) if k + 1 < nk else [None]*5
            for c in range(5):
                cc = acc[4*c:4*c+4]
                g = [nx[c]] if nx[c] else []
                main.append(g + [f"v_mfma_f32_16x16x32_bf16 {cc}, {wf[ks&1][4*c:4*c+4]}, {X[i%(D+1)][4*k:4*k+4]}, {cc if ks else 0}"])
        fill = loads(i+D) if i + D < nst else (epi if i + D == nst else [])
        for l in interleave(main, fill): a(l)
    T()
    f = wf[0]
    for j in range(10): a(f"v_lshlrev_b32 {f[2*j]}, 16, {xr[j]}\nv_and_b32 {f[2*j+1]}, 0xffff0000, {xr[j]}")
    for j in range(10): a(f"v_pk_fma_f32 {f[2*j:2*j+2]}, {acc[2*j:2*j+2]}, {gm[2*j:2*j+2]}, {f[2*j:2*j+2]}")
    for j in range(10): a(f"v_cvt_pk_bf16_f32 {xr[j]}, {f[2*j]}, {f[2*j+1]}")
    for g in (fragmaj('store', xr) if kind == 'wo' else rowmaj('store', xr)): a('\n'.join(g))
    if kind == 'wo':
        one, sm, sq = V(), V(), V()
        a(f"v_mov_b32 {one}, {ONES_BF:#x}")
        for j in range(10):
            a(f"v_dot2_f32_bf16 {sm}, {xr[j]}, {one}, {sm if j else 0}\nv_dot2_f32_bf16 {sq}, {xr[j]}, {xr[j]}, {sq if j else 0}")
        a(f"v_and_b32 {u}, 15, {lane}\nv_lshlrev_b32 {u}, 6, {u}\nv_lshrrev_b32 {t}, 5, {lane}\nv_lshl_add_u32 {u}, {t}, 2, {u}")
        a(f"s_lshl_b32 {st}, {rb}, 2\ns_add_u32 {st}, {st}, {wv}\ns_lshl_b32 {st}, {st}, 10\ns_lshl_b32 {st2}, {cb}, 3\ns_add_u32 {st}, {st}, {st2}")
        a(f"v_permlane32_swap_b32 {sm}, {sq}\nv_add_f32 {sm}, {sm}, {sq}\nv_mov_b32 {sq}, {sm}\nv_permlane16_swap_b32 {sm}, {sq}\nv_add_f32 {sm}, {sm}, {sq}")
        a(f"buffer_store_dword {sm}, {u}, {rs}, {st} offen")
    T(); a("s_waitcnt vmcnt(0)" if DIAG else ""); T.flush()
    a("s_endpgm")
    lines = auto_wait(a.lines)
    b = Asm(); b.label(f"L{name}_other"); hi = V.hi
    if extra:
        b(f"s_sub_u32 s3, s2, 256\ns_cmp_lt_u32 s3, {extra}\ns_cbranch_scc1 L{name}_wg\ns_endpgm\nL{name}_wg:")
        hi = max(hi, role_wg(b, Reg('s', 3)))
    else: b("s_endpgm")
    lines += auto_wait(b.lines)
    lines, _ = fix_hazards(lines)
    return dict(name=name + '_kernel', lines=lines, vgpr=hi, agpr=0, grid=256 + extra, block=256, lds=NSL*20480)

def gen_k3():
    a = Asm()
    S = Alloc('s', 40, 100); V = Alloc('v', 1, 256)
    load_args(a)
    a("s_cmp_ge_u32 s2, 256\ns_cbranch_scc1 Lk3_end")
    T = Stamps(a, 3); T()
    rx, rw, ru, rs, ro = S(4), S(4), S(4), S(4), S(4)
    rb, cb, u0, wv, st, st2, sxo, swo, slds = S(), S(), S(), S(), S(), S(), S(), S(), S()
    lane, l16, t, u = V(), V(), V(), V()
    a(f"s_and_b32 {rb}, s2, 1\ns_lshl_b32 {rb}, {rb}, 3\ns_lshr_b32 {st}, s2, 5\ns_add_u32 {rb}, {rb}, {st}")
    a(f"s_bfe_u32 {cb}, s2, 0x20001\ns_lshl_b32 {cb}, {cb}, 2\ns_bfe_u32 {st}, s2, 0x20003\ns_add_u32 {cb}, {cb}, {st}")
    a(f"s_mul_i32 {u0}, {cb}, 7\ns_mul_i32 {st}, {cb}, 6\ns_add_u32 {st}, {st}, 11\ns_min_u32 {u0}, {u0}, {st}")
    a(f"v_lshrrev_b32 {t}, 6, v0\nv_and_b32 {lane}, 63, v0\nv_readfirstlane_b32 {wv}, {t}")
    a(f"v_lshlrev_b32 {l16}, 4, {lane}")
    a(f"s_lshl_b32 {sxo}, {rb}, 2\ns_add_u32 {sxo}, {sxo}, {wv}\ns_mul_i32 {sxo}, {sxo}, 40960")
    a(f"s_mul_i32 {slds}, {wv}, 7168\ns_mul_i32 {swo}, {u0}, 40960\ns_lshl_b32 {st}, {wv}, 10\ns_add_u32 {swo}, {swo}, {st}")
    a("s_waitcnt lgkmcnt(0)")
    srd(a, rx, 'ws', WS_X1F, SZ_ACT16); srd(a, rw, 'ws', WS_WGF, SZ_WGF)
    D = 3; NSL = 4; nst = 10; SL = 28672; L_U = NSL*SL
    X = [V(16) for _ in range(D+1)]
    wf = [V(28) for _ in range(2)]
    acc = V(112)
    def loads(i):
        o = []
        for c in range(7):
            o.append([f"s_add_u32 {st2}, {swo}, {c*40960 + i*4096}", f"s_add_u32 m0, {slds}, {(i%NSL)*SL + c*1024}",
                      f"@tag w{i}", f"buffer_load_dwordx4 {l16}, {rw}, {st2} offen lds"])
        for k in range(4):
            g = [f"s_add_u32 {st2}, {sxo}, {i*4096}"] if k == 0 else []
            g.append(f"buffer_load_dwordx4 {X[i%(D+1)][4*k:4*k+4]}, {l16}, {rx}, {st2} offen offset:{k*1024}")
            o.append(g)
        return o
    for i in range(D):
        for g in loads(i): a('\n'.join(g))
    srd(a, ru, 'ws', WS_UP, SZ_UP); srd(a, rs, 'ws', WS_ST2, SZ_ST2); srd(a, ro, 'ws', WS_ACTF, SZ_ACTF)
    vw2 = V(); a(f"v_add_u32 {vw2}, {2*SL}, {l16}")
    vu, vs_, mr, rstd = V(), V(), V(2), V(2)
    a(f"v_lshlrev_b32 {vu}, 3, v0\nv_and_b32 {vs_}, 31, {lane}\nv_lshlrev_b32 {vs_}, 6, {vs_}")
    def rd_w(ks):
        i, k = divmod(ks, 4); off = (i % NSL)*SL + k*7168
        base = l16
        if off >= 2*SL: base, off = vw2, off - 2*SL
        return [f"ds_read_b128 {wf[ks&1][4*c:4*c+4]}, {base} offset:{off + c*1024}" for c in range(7)]
    UPR = X[(7+D) % (D+1)]; STR = X[(8+D) % (D+1)]
    for i in range(nst):
        if i == 0: T()
        a(f"@waitvm w{i}")
        if i == 9: a("s_waitcnt lgkmcnt(0)")
        a("s_barrier")
        if i in (0, 5): T()
        a('\n'.join(rd_w(4*i)))
        main = []
        for k in range(4):
            ks = 4*i + k
            nx = rd_w(ks+1) if k < 3 else [None]*7
            for c in range(7):
                cc = acc[16*c:16*c+16]
                g = [nx[c]] if nx[c] else []
                main.append(g + [f"v_mfma_f32_32x32x16_bf16 {cc}, {wf[ks&1][4*c:4*c+4]}, {X[i%(D+1)][4*k:4*k+4]}, {cc if ks else 0}"])
        if i + D < nst: fill = loads(i+D)
        elif i == 7:
            fill = [[f"s_lshl_b32 {st}, {u0}, 8"]]
            fill += [[f"s_add_u32 {st2}, {st}, {p*108*256}", f"buffer_load_dwordx2 {UPR[2*p:2*p+2]}, {vu}, {ru}, {st2} offen"] for p in range(8)]
        elif i == 8:
            fill = [[f"s_lshl_b32 {st}, {rb}, 2", f"s_add_u32 {st}, {st}, {wv}", f"s_lshl_b32 {st}, {st}, 11"]]
            fill += [[f"buffer_load_dwordx4 {STR[4*p:4*p+4]}, {vs_}, {rs}, {st} offen offset:{16*p}"] for p in range(4)]
            fill += [[]]*8
            fill += [[f"v_pk_add_f32 {UPR[2*p:2*p+2]}, {UPR[2*p:2*p+2]}, {UPR[2*p+8:2*p+10]}"] for p in range(4)]
            fill += [[f"v_pk_add_f32 {UPR[2*p:2*p+2]}, {UPR[2*p:2*p+2]}, {UPR[2*p+4:2*p+6]}"] for p in range(2)]
            fill += [[f"v_pk_add_f32 {UPR[0:2]}, {UPR[0:2]}, {UPR[2:4]}"], [f"v_add_u32 {vu}, {L_U}, {vu}"], [f"ds_write_b64 {vu}, {UPR[0:2]}"]]
        else:
            fill = [[]]*6
            fill += [[f"v_pk_add_f32 {STR[2*p:2*p+2]}, {STR[2*p:2*p+2]}, {STR[2*p+8:2*p+10]}"] for p in range(4)]
            fill += [[f"v_pk_add_f32 {STR[2*p:2*p+2]}, {STR[2*p:2*p+2]}, {STR[2*p+4:2*p+6]}"] for p in range(2)]
            fill += [[f"v_pk_add_f32 {STR[0:2]}, {STR[0:2]}, {STR[2:4]}"]]
            fill += [[f"v_mul_f32 {STR[0]}, {f2u(1/640):#x}, {STR[0]}"], [f"v_mov_b32 {STR[2]}, {f2u(1e-5):#x}"],
                     [f"v_fmac_f32 {STR[2]}, {f2u(1/640):#x}, {STR[1]}"], [f"v_fma_f32 {STR[2]}, -{STR[0]}, {STR[0]}, {STR[2]}"],
                     [f"v_rsq_f32 {rstd[0]}, {STR[2]}"], [f"v_lshrrev_b32 {vu}, 5, {lane}"], [f"v_mul_f32 {mr[0]}, {STR[0]}, {rstd[0]}"],
                     [f"v_lshlrev_b32 {vu}, 4, {vu}"], [f"v_add_u32 {vu}, {L_U}, {vu}"]]
        for l in interleave(main, fill): a(l)
    T()
    vo = V(); nl = V(2); onep = V(2)
    a(f"v_bfe_u32 {t}, {lane}, 4, 1\nv_mul_u32_u24 {vo}, 55296, {t}\nv_and_b32 {u}, 15, {lane}\nv_lshl_add_u32 {vo}, {u}, 4, {vo}\nv_lshrrev_b32 {u}, 5, {lane}\nv_lshl_add_u32 {vo}, {u}, 8, {vo}")
    a(f"s_lshl_b32 {st}, {rb}, 2\ns_add_u32 {st}, {st}, {wv}\ns_mul_i32 {st}, {st}, {2*55296}\ns_lshl_b32 {st2}, {u0}, 9\ns_add_u32 {st}, {st}, {st2}")
    a(f"v_mov_b32 {nl[0]}, {LOG2E | 0x80000000:#x}\nv_mov_b32 {onep[0]}, 1.0")
    ub = [Reg('v', X[0].idx, 32), Reg('v', X[2].idx, 32)]
    assert X[1].idx == X[0].idx + 16 and X[3].idx == X[2].idx + 16
    def rd_u(c): return [f"ds_read_b128 {ub[c&1][4*q:4*q+4]}, {vu} offset:{c*256 + (q>>2)*128 + (q&3)*32}" for q in range(8)]
    e = wf[0]
    a('\n'.join(rd_u(0)))
    for c in range(7):
        if c < 6: a('\n'.join(rd_u(c+1)))
        U = ub[c&1]; A = acc[16*c:16*c+16]
        for j in range(8): a(f"v_pk_fma_f32 {U[16+2*j:18+2*j]}, {U[2*j:2*j+2]}, {mr}, {U[16+2*j:18+2*j]} op_sel_hi:[1,0,1] neg_lo:[0,1,0] neg_hi:[0,1,0]")
        for j in range(8): a(f"v_pk_fma_f32 {A[2*j:2*j+2]}, {A[2*j:2*j+2]}, {rstd}, {U[16+2*j:18+2*j]} op_sel_hi:[1,0,1]")
        for j in range(4): a(f"v_pk_mul_f32 {e[2*j:2*j+2]}, {A[2*j:2*j+2]}, {nl} op_sel_hi:[1,0]")
        for j in range(8): a(f"v_exp_f32 {e[j]}, {e[j]}")
        for j in range(4): a(f"v_pk_mul_f32 {A[2*j:2*j+2]}, {A[2*j:2*j+2]}, {A[8+2*j:10+2*j]}")
        for j in range(4): a(f"v_pk_add_f32 {e[2*j:2*j+2]}, {e[2*j:2*j+2]}, {onep} op_sel_hi:[1,0]")
        for j in range(8): a(f"v_rcp_f32 {e[j]}, {e[j]}")
        for j in range(4): a(f"v_pk_mul_f32 {A[2*j:2*j+2]}, {A[2*j:2*j+2]}, {e[2*j:2*j+2]}")
        for j in range(4): a(f"v_cvt_pk_bf16_f32 {A[8+j]}, {A[2*j]}, {A[2*j+1]}")
        a(f"buffer_store_dwordx4 {A[8:12]}, {vo}, {ro}, {st} offen offset:{c*512}")
    T(); a("s_waitcnt vmcnt(0)" if DIAG else ""); T.flush()
    a("Lk3_end:\ns_endpgm")
    return dict(name='k3_kernel', lines=finish(a), vgpr=V.hi, agpr=0, grid=256, block=256, lds=L_U + 2048)

def gen_k0():
    a = Asm()
    load_args(a)
    roles = [('wq', 160, role_wq), ('xn', 128, role_xn), ('mod', 240, role_mod), ('wn', 148, role_wn)]
    hi = 0
    a("s_mov_b32 s3, s2")
    for n, cnt, f in roles:
        a(f"s_cmp_lt_u32 s3, {cnt}\ns_cbranch_scc1 Lk0_{n}\ns_sub_u32 s3, s3, {cnt}")
    a("s_endpgm")
    out = list(a.lines)
    for n, cnt, f in roles:
        b = Asm(); b.label(f"Lk0_{n}")
        hi = max(hi, f(b, Reg('s', 3)))
        out += auto_wait(b.lines)
    out, _ = fix_hazards(out)
    return dict(name='k0_kernel', lines=out, vgpr=hi, agpr=0, grid=sum(r[1] for r in roles), block=256, lds=20480)

def build(kernels, path):
    hdr = open('adaLN_cond__sliding_block__swiglu_ffn__prompt.s.ref').read().split('\n')
    hdr = [l for l in hdr if l.startswith(';') and '@launch' not in l and 'Override launch' not in l and 'grid=ceil' not in l]
    s = '\n'.join(hdr) + '\n'
    for k in kernels: s += f"; @launch kernel={k['name']} grid=({k['grid']},1,1) block=({k['block']},1,1) lds={k['lds']}\n"
    s += '.amdgcn_target "amdgcn-amd-amdhsa--gfx950"\n.text\n'
    seen = set()
    for k in kernels:
        if k['name'] in seen: continue
        seen.add(k['name']); s += kernel_text(k['name'], k['lines'])
    s += '.section .rodata,"a"\n'
    seen = set()
    for k in kernels:
        if k['name'] in seen: continue
        seen.add(k['name']); s += kd_text(k['name'], k['vgpr'], k['agpr'])
    open(path, 'w').write(s)

if __name__ == '__main__':
    if '--diag' in sys.argv: DIAG = 1
    if '--cyc' in sys.argv: DIAG = 2
    build([gen_k0(), gen_k1(), gen_narrow('k2', 20, 'wo'), gen_k3(), gen_narrow('k4', 54, 'wd')], sys.argv[1] if len(sys.argv) > 1 else 'k.s')
```

```python
import sys, re; sys.path.insert(0,'tools')
import gen
from gen import *
def mk(): return [gen_k0(), gen_k1(), gen_narrow('k2', 20, 'wo'), gen_k3(), gen_narrow('k4', 54, 'wd')]
def stores(ks, mod):
    for k in ks:
        k['lines'] = [ (l + mod if l.startswith('buffer_store') and 'sc1' not in l else l) for l in k['lines']]
    return ks
build(stores(mk(), ' sc1'), 'v_sc1.s')
build(stores(mk(), ' nt'), 'v_nt.s')
build(stores(mk(), ' sc0 sc1'), 'v_sc01.s')
ks = mk()
k0 = ks[0]
i = k0['lines'].index('s_endpgm')
extra = ["s_cmp_lt_u32 s3, 128", "s_cbranch_scc0 Lk0_x", "s_waitcnt lgkmcnt(0)", "s_mov_b32 s40, s22", "s_mov_b32 s41, s23", "s_mov_b32 s42, 0x280000", "s_mov_b32 s43, 0x20000",
         "s_mul_i32 s44, s3, 20480", "v_lshlrev_b32 v1, 4, v0"]
for j in range(5): extra += [f"buffer_load_dwordx4 v[4:7], v1, s[40:43], s44 offen", "s_add_u32 s44, s44, 4096"]
extra += ["s_waitcnt vmcnt(0)", "Lk0_x:"]
k0['lines'][i:i] = extra; k0['grid'] += 128
build(ks, 'v_bx.s')
ks = mk(); k0 = ks[0]
i = k0['lines'].index('s_endpgm')
extra = ["s_cmp_lt_u32 s3, 96", "s_cbranch_scc0 Lk0_x", "s_getpc_b64 s[40:41]", "Lk0_pc:", "s_add_u32 s40, s40, k1_kernel-Lk0_pc", "s_addc_u32 s41, s41, 0", "s_mov_b32 s42, Lcode_end-k1_kernel", "s_mov_b32 s43, 0x20000",
         "s_lshr_b32 s44, s3, 3", "s_lshl_b32 s44, s44, 12", "v_lshlrev_b32 v1, 4, v0", "buffer_load_dwordx4 v[4:7], v1, s[40:43], s44 offen", "s_waitcnt vmcnt(0)", "Lk0_x:"]
k0['lines'][i:i] = extra; k0['grid'] += 96
ks[4]['lines'].append('Lcode_end:')
build(ks, 'v_pf.s')
```

```python
import sys
sys.path.insert(0, 'tools')
from asmgen import *
from layout import *

LOG2E = 0x3fb8aa3b
ONES_BF = 0x3f803f80
def f2u(x):
    import struct
    return struct.unpack('<I', struct.pack('<f', x))[0]

P = dict(x=16, wqkv=18, wo=20, wg=24, wu=26, wd=28, c=30, wmod=32, out=34, dbg=36, ws=38)
def load_args(a):
    a("s_load_dwordx16 s[16:31], s[0:1], 0")
    a("s_load_dwordx8 s[32:39], s[0:1], 64")
def srd(a, d, ptr, off, size):
    p = P[ptr]
    if off:
        a(f"s_add_u32 {d[0]}, s{p}, {off:#x}")
        a(f"s_addc_u32 {d[1]}, s{p+1}, 0")
    else:
        a(f"s_mov_b32 {d[0]}, s{p}")
        a(f"s_mov_b32 {d[1]}, s{p+1}")
    a(f"s_mov_b32 {d[2]}, {size:#x}")
    a(f"s_mov_b32 {d[3]}, 0x20000")

DIAG = False
WS_TS = 0x3000000
class Stamps:
    def __init__(self, a, kidx): self.a, self.k, self.n = a, kidx, 0
    def __call__(self):
        if not DIAG: return
        assert self.n < 8
        self.a(f"{'s_memtime' if DIAG == 2 else 's_memrealtime'} s[{4+0}:{5}]\ns_waitcnt lgkmcnt(0)\ns_mov_b32 s{6+self.n}, s4"); self.n += 1
    def flush(self):
        if not DIAG: return
        self()
        a = self.a
        a("s_mov_b64 exec, -1")
        if DIAG == 3:
            a(f"s_sub_u32 s40, s36, {512*self.k}\ns_subb_u32 s41, s37, 0\ns_mov_b32 s42, 256\ns_mov_b32 s43, 0x20000")
            a(f"s_not_b32 s4, s6\nv_mov_b32 v1, 0\nv_mov_b32 v2, s4\nv_mov_b32 v3, s{6+self.n-1}\ns_mov_b64 exec, 1")
            a(f"v_cmp_gt_u32 vcc, 64, v0\ns_and_b64 exec, exec, vcc\ns_cbranch_execz Lst{id(self)}")
            a(f"buffer_atomic_umax v2, v1, s[40:43], 0 offen offset:{8*self.k}\nbuffer_atomic_umax v3, v1, s[40:43], 0 offen offset:{8*self.k+4}\nLst{id(self)}:")
            return
        a(f"s_add_u32 s40, s38, {WS_TS + self.k*1024*8*32:#x}\ns_addc_u32 s41, s39, 0\ns_mov_b32 s42, {1024*8*32}\ns_mov_b32 s43, 0x20000")
        a("v_lshrrev_b32 v1, 6, v0\nv_lshlrev_b32 v1, 5, v1\ns_lshl_b32 s4, s2, 8")
        for i in range(self.n): a(f"v_mov_b32 v2, s{6+i}\nbuffer_store_dword v2, v1, s[40:43], s4 offen offset:{4*i}")

def nib(vals):
    r = 0
    for i, v in enumerate(vals): r |= v << (4*i)
    return r

def role_mod(a, sid):
    T = Stamps(a, 0); T()
    S = Alloc('s', 40, 100); V = Alloc('v', 1, 128)
    rw, rc, rp = S(4), S(4), S(4)
    ks, cg, t0, t1 = S(), S(), S(), S()
    a(f"s_mul_hi_u32 {ks}, {sid}, {(2**32+59)//60:#x}")
    a(f"s_mul_i32 {t0}, {ks}, 60")
    a(f"s_sub_u32 {cg}, {sid}, {t0}")
    vrow, voff, vc = V(), V(), V()
    a(f"s_mul_i32 {t0}, {ks}, 160")
    a(f"v_lshrrev_b32 {vrow}, 3, v0")
    a(f"v_add_u32 {vrow}, {t0}, {vrow}")
    a(f"v_mul_u32_u24 {voff}, 7680, {vrow}")
    a(f"v_and_b32 {vc}, 7, v0")
    a(f"v_lshl_add_u32 {voff}, {vc}, 4, {voff}")
    a(f"s_lshl_b32 {t1}, {cg}, 7")
    a(f"v_add_u32 {voff}, {t1}, {voff}")
    a(f"v_lshlrev_b32 {vrow}, 1, {vrow}")
    a("s_waitcnt lgkmcnt(0)")
    srd(a, rw, 'wmod', 0, 640*3840*2); srd(a, rc, 'c', 0, 1280)
    w = [V(4) for _ in range(5)]; c = [V() for _ in range(5)]
    for i in range(5): a(f"buffer_load_ushort {c[i]}, {vrow}, {rc}, 0 offen offset:{64*i}")
    for i in range(5):
        a(f"s_mov_b32 {t0}, {32*7680*i}")
        a(f"buffer_load_dwordx4 {w[i]}, {voff}, {rw}, {t0} offen")
    srd(a, rp, 'ws', WS_MODP, SZ_MODP)
    ylo = [V() for _ in range(5)]; yhi = [V() for _ in range(5)]
    a(f"s_mov_b32 {t1}, {LOG2E | 0x80000000:#x}")
    for i in range(5): a(f"v_lshlrev_b32 {c[i]}, 16, {c[i]}")
    for i in range(5): a(f"v_mul_f32 {ylo[i]}, {t1}, {c[i]}")
    for i in range(5): a(f"v_exp_f32 {ylo[i]}, {ylo[i]}")
    for i in range(5): a(f"v_add_f32 {ylo[i]}, 1.0, {ylo[i]}")
    for i in range(5): a(f"v_rcp_f32 {ylo[i]}, {ylo[i]}")
    for i in range(5): a(f"v_mul_f32 {ylo[i]}, {c[i]}, {ylo[i]}")
    for i in range(5): a(f"v_cvt_pk_bf16_f32 {ylo[i]}, {ylo[i]}, 0")
    for i in range(5): a(f"v_lshlrev_b32 {yhi[i]}, 16, {ylo[i]}")
    acc = V(8)
    for i in range(5):
        for j in range(8):
            y = (ylo, yhi)[j & 1][i]
            a(f"v_dot2_f32_bf16 {acc[j]}, {w[i][j>>1]}, {y}, {acc[j] if i else 0}")
    for j in range(4): a(f"v_permlane32_swap_b32 {acc[j]}, {acc[j+4]}")
    for j in range(4): a(f"v_add_f32 {acc[j]}, {acc[j]}, {acc[j+4]}")
    for j in range(2): a(f"v_permlane16_swap_b32 {acc[j]}, {acc[j+2]}")
    for j in range(2): a(f"v_add_f32 {acc[j]}, {acc[j]}, {acc[j+2]}")
    for j in range(2): a(f"v_add_f32 {acc[j]}, {acc[j]}, {acc[j]} row_ror:8 row_mask:0xf bank_mask:0xf")
    t = V(); u = V()
    a(f"v_lshlrev_b32 {t}, 5, {vc}")
    a(f"v_bfe_u32 {u}, v0, 4, 2")
    a(f"v_lshl_add_u32 {t}, {u}, 3, {t}")
    a(f"v_lshrrev_b32 {u}, 6, v0")
    a(f"v_lshl_add_u32 {t}, {u}, 8, {t}")
    a(f"ds_write_b64 {t}, {acc[0:2]}")
    a("s_waitcnt lgkmcnt(0)\ns_barrier")
    a(f"v_and_b32 {t}, 63, v0\nv_lshlrev_b32 {t}, 2, {t}")
    for i in range(4): a(f"ds_read_b32 {acc[i]}, {t} offset:{256*i}")
    a(f"s_mul_i32 {t0}, {ks}, {3840*4}")
    a(f"s_lshl_b32 {t1}, {cg}, 8")
    a(f"s_add_u32 {t0}, {t0}, {t1}")
    a(f"v_add_f32 {acc[0]}, {acc[0]}, {acc[1]}\nv_add_f32 {acc[2]}, {acc[2]}, {acc[3]}\nv_add_f32 {acc[0]}, {acc[0]}, {acc[2]}")
    a(f"buffer_store_dword {acc[0]}, {t}, {rp}, {t0} offen")
    a("s_waitcnt vmcnt(0)" if DIAG else ""); T.flush()
    a("s_endpgm")
    return V.hi

def role_xn(a, sid):
    T = Stamps(a, 0); T()
    S = Alloc('s', 40, 100); V = Alloc('v', 1, 128)
    rx, rf, rfl = S(4), S(4), S(4)
    t0, t1 = S(), S()
    vrow, vc, voff, vo2 = V(), V(), V(), V()
    a(f"v_lshrrev_b32 {vrow}, 6, v0\nv_and_b32 {vc}, 3, v0\nv_lshl_add_u32 {vrow}, {vrow}, 2, {vc}")
    a(f"s_lshl_b32 {t0}, {sid}, 4\nv_add_u32 {vrow}, {t0}, {vrow}")
    a(f"v_bfe_u32 {vc}, v0, 2, 4")
    a(f"v_mul_u32_u24 {voff}, 1280, {vrow}\nv_lshl_add_u32 {voff}, {vc}, 4, {voff}")
    a("s_waitcnt lgkmcnt(0)")
    srd(a, rx, 'x', 0, SZ_ACT16)
    w = [V(4) for _ in range(5)]
    for i in range(5): a(f"buffer_load_dwordx4 {w[i]}, {voff}, {rx}, 0 offen offset:{256*i}")
    srd(a, rf, 'ws', WS_XF, SZ_ACT16); srd(a, rfl, 'ws', WS_FLAG, SZ_FLAG)
    z = V()
    a(f"v_mov_b32 {z}, 0\nv_and_b32 {vo2}, 63, v0\nv_lshlrev_b32 {vo2}, 2, {vo2}\ns_lshl_b32 {t1}, {sid}, 8")
    a(f"buffer_store_dword {z}, {vo2}, {rfl}, {t1} offen")
    a(f"v_lshrrev_b32 {vo2}, 5, {vrow}\nv_mul_u32_u24 {vo2}, 40960, {vo2}\nv_lshl_add_u32 {vo2}, {vc}, 9, {vo2}")
    a(f"v_and_b32 {vrow}, 31, {vrow}\nv_lshl_add_u32 {vo2}, {vrow}, 4, {vo2}")
    f = V(40); sm = V(2); tmp = V(2); one = V()
    a(f"v_mov_b32 {one}, {ONES_BF:#x}")
    def allreduce(x, t):
        a(f"v_add_f32 {x}, {x}, {x} row_ror:4 row_mask:0xf bank_mask:0xf")
        a(f"v_add_f32 {x}, {x}, {x} row_ror:8 row_mask:0xf bank_mask:0xf")
        a(f"v_mov_b32 {t}, {x}\nv_permlane16_swap_b32 {x}, {t}\nv_add_f32 {x}, {x}, {t}")
        a(f"v_mov_b32 {t}, {x}\nv_permlane32_swap_b32 {x}, {t}\nv_add_f32 {x}, {x}, {t}")
    for i in range(5):
        for j in range(4):
            a(f"v_dot2_f32_bf16 {sm[j&1]}, {w[i][j]}, {one}, {sm[j&1] if (i or j>1) else 0}")
            a(f"v_lshlrev_b32 {f[8*i+2*j]}, 16, {w[i][j]}")
            a(f"v_and_b32 {f[8*i+2*j+1]}, 0xffff0000, {w[i][j]}")
    a(f"v_add_f32 {sm[0]}, {sm[0]}, {sm[1]}")
    allreduce(sm[0], tmp[0])
    a(f"v_mul_f32 {sm[0]}, {f2u(-1.0/640):#x}, {sm[0]}")
    for j in range(20): a(f"v_pk_add_f32 {f[2*j:2*j+2]}, {f[2*j:2*j+2]}, {sm} op_sel_hi:[1,0]")
    for j in range(20):
        if j == 0: a(f"v_pk_mul_f32 {tmp}, {f[0:2]}, {f[0:2]}")
        else: a(f"v_pk_fma_f32 {tmp}, {f[2*j:2*j+2]}, {f[2*j:2*j+2]}, {tmp}")
    a(f"v_add_f32 {sm[0]}, {tmp[0]}, {tmp[1]}")
    allreduce(sm[0], tmp[0])
    a(f"v_mov_b32 {tmp[0]}, {f2u(1e-5):#x}")
    a(f"v_fmac_f32 {tmp[0]}, {f2u(1.0/640):#x}, {sm[0]}")
    a(f"v_rsq_f32 {sm[0]}, {tmp[0]}")
    for j in range(20): a(f"v_pk_mul_f32 {f[2*j:2*j+2]}, {f[2*j:2*j+2]}, {sm} op_sel_hi:[1,0]")
    for i in range(5):
        for j in range(4): a(f"v_cvt_pk_bf16_f32 {w[i][j]}, {f[8*i+2*j]}, {f[8*i+2*j+1]}")
        a(f"s_mov_b32 {t0}, {8192*i}")
        a(f"buffer_store_dwordx4 {w[i]}, {vo2}, {rf}, {t0} offen")
    a("s_waitcnt vmcnt(0)" if DIAG else ""); T.flush()
    a("s_endpgm")
    return V.hi

QUADS = None
def wq_quads(par):
    base, tail = (0, 4) if par == 0 else (1, 0)
    q = [(0, i) for i in range(5)] + [(2, tail)] + [(1, i) for i in range(5)] + [(1, 4)]
    q += [(2, base), (2, base+2), (2, base+1), (2, base+3)]
    return q
def role_wq(a, sid):
    T = Stamps(a, 0); T()
    S = Alloc('s', 40, 100); V = Alloc('v', 1, 128)
    rw, rf = S(4), S(4)
    ks, hg, wv, t0, t1 = S(), S(), S(), S(), S()
    lane, t, u = V(), V(), V()
    a(f"s_lshr_b32 {ks}, {sid}, 2\ns_and_b32 {hg}, {sid}, 3")
    a(f"v_lshrrev_b32 {t}, 6, v0\nv_and_b32 {lane}, 63, v0\nv_readfirstlane_b32 {wv}, {t}")
    off = [V() for _ in range(5)]
    for i in range(5):
        a(f"v_add_u32 {t}, {64*i}, {lane}")
        a(f"v_mul_u32_u24 {u}, 3277, {t}\nv_lshrrev_b32 {u}, 16, {u}")
        a(f"v_mul_u32_u24 {off[i]}, {3840-320}, {u}\nv_lshl_add_u32 {off[i]}, {t}, 4, {off[i]}")
    a(f"s_mul_i32 {t0}, {ks}, {16*3840}\ns_mul_i32 {t1}, {wv}, 1280\ns_add_u32 {t0}, {t0}, {t1}\ns_mul_i32 {t1}, {hg}, 320\ns_add_u32 {t0}, {t0}, {t1}")
    a("s_waitcnt lgkmcnt(0)")
    srd(a, rw, 'wqkv', 0, 640*1920*2); srd(a, rf, 'ws', WS_WQF, SZ_WQF)
    a(f"s_cmp_eq_u32 {wv}, 3\ns_cbranch_scc1 Lwq_noload")
    a(f"s_mul_i32 {t1}, {wv}, 5120")
    for i in range(5):
        a(f"s_add_u32 m0, {t1}, {1024*i}")
        a(f"buffer_load_dwordx4 {off[i]}, {rw}, {t0} offen lds")
    a("Lwq_noload:")
    q, kr = V(), V()
    a(f"v_bfe_u32 {q}, {lane}, 4, 1\nv_and_b32 {t}, 3, {lane}\nv_lshl_add_u32 {q}, {q}, 2, {t}\nv_lshlrev_b32 {q}, 2, {q}")
    a(f"v_lshrrev_b32 {kr}, 5, {lane}\nv_bfe_u32 {t}, {lane}, 2, 2\nv_lshl_add_u32 {kr}, {kr}, 3, {t}\nv_mul_u32_u24 {kr}, 320, {kr}")
    a(f"s_mul_i32 {t1}, {wv}, 80\nv_add_u32 {kr}, {t1}, {kr}")
    ad = {}
    for par in range(2):
        Q = wq_quads(par)
        for tl in range(2):
            r = V(); ad[par, tl] = r
            a(f"s_mov_b32 {t1}, {nib([x[0] for x in Q[8*tl:8*tl+8]]):#x}\nv_bfe_u32 {t}, {t1}, {q}, 4")
            a(f"s_mov_b32 {t1}, {nib([x[1] for x in Q[8*tl:8*tl+8]]):#x}\nv_bfe_u32 {u}, {t1}, {q}, 4")
            a(f"v_mul_u32_u24 {t}, 5120, {t}\nv_lshl_add_u32 {t}, {u}, 3, {t}\nv_add_u32 {r}, {t}, {kr}")
    vo = V()
    a(f"v_lshlrev_b32 {vo}, 4, {lane}")
    a(f"s_lshl_b32 {t0}, {hg}, 2\ns_add_u32 {t0}, {t0}, {wv}\ns_mul_i32 {t0}, {t0}, {2*81920}\ns_lshl_b32 {t1}, {ks}, 11\ns_add_u32 {t0}, {t0}, {t1}")
    a(f"s_add_u32 {t1}, {t0}, 81920")
    a("s_waitcnt vmcnt(0)\ns_barrier")
    fr = {}
    for par in range(2):
        for tl in range(2):
            f = V(4); fr[par, tl] = f
            for uu in range(2): a(f"ds_read_b64_tr_b16 {f[2*uu:2*uu+2]}, {ad[par,tl]} offset:{par*40 + uu*1280}")
    for par in range(2):
        for tl in range(2):
            a(f"buffer_store_dwordx4 {fr[par,tl]}, {vo}, {rf}, {(t0,t1)[par]} offen offset:{1024*tl}")
    a("s_waitcnt vmcnt(0)" if DIAG else ""); T.flush()
    a("s_endpgm")
    return V.hi

def role_wn(a, sid):
    T = Stamps(a, 0); T()
    S = Alloc('s', 40, 100); V = Alloc('v', 1, 128)
    rw, rf = S(4), S(4)
    ks, hf, wv, t0, t1, nk = S(), S(), S(), S(), S(), S()
    lane, t, u = V(), V(), V()
    a(f"s_lshr_b32 {ks}, {sid}, 1\ns_and_b32 {hf}, {sid}, 1")
    a(f"v_lshrrev_b32 {t}, 6, v0\nv_and_b32 {lane}, 63, v0\nv_readfirstlane_b32 {wv}, {t}")
    off = [V() for _ in range(5)]
    for i in range(5):
        a(f"v_add_u32 {t}, {64*i}, {lane}")
        a(f"v_mul_u32_u24 {u}, 1639, {t}\nv_lshrrev_b32 {u}, 16, {u}")
        a(f"v_mul_u32_u24 {off[i]}, {1280-640}, {u}\nv_lshl_add_u32 {off[i]}, {t}, 4, {off[i]}")
    a("s_waitcnt lgkmcnt(0)")
    a(f"s_cmp_lt_u32 {ks}, 20\ns_cbranch_scc0 Lwn_wd")
    srd(a, rw, 'wo', 0, SZ_WOF); srd(a, rf, 'ws', WS_WOF, SZ_WOF); a(f"s_mov_b32 {nk}, 20\ns_branch Lwn_go")
    a("Lwn_wd:")
    srd(a, rw, 'wd', 0, SZ_WDF); srd(a, rf, 'ws', WS_WDF, SZ_WDF); a(f"s_mov_b32 {nk}, 54\ns_sub_u32 {ks}, {ks}, 20")
    a("Lwn_go:")
    a(f"s_lshl_b32 {t0}, {ks}, 2\ns_add_u32 {t0}, {t0}, {wv}\ns_mul_i32 {t0}, {t0}, {8*1280}\ns_mul_i32 {t1}, {hf}, 640\ns_add_u32 {t0}, {t0}, {t1}")
    a(f"s_mul_i32 {t1}, {wv}, 5120")
    for i in range(5):
        a(f"s_add_u32 m0, {t1}, {1024*i}")
        a(f"buffer_load_dwordx4 {off[i]}, {rw}, {t0} offen lds")
    a0, a1, kr = V(), V(), V()
    a(f"v_lshrrev_b32 {kr}, 4, {lane}\nv_bfe_u32 {t}, {lane}, 2, 2\nv_lshl_add_u32 {kr}, {kr}, 3, {t}\nv_mul_u32_u24 {kr}, 640, {kr}")
    a(f"s_mul_i32 {t1}, {wv}, 160\nv_add_u32 {kr}, {t1}, {kr}\nv_and_b32 {t}, 3, {lane}")
    a(f"v_lshl_add_u32 {a0}, {t}, 4, {kr}\nv_lshl_add_u32 {a1}, {t}, 3, {kr}")
    vo = V()
    a(f"v_lshlrev_b32 {vo}, 4, {lane}")
    a(f"s_lshl_b32 {t0}, {hf}, 2\ns_add_u32 {t0}, {t0}, {wv}\ns_mul_i32 {t0}, {t0}, {nk}\ns_add_u32 {t0}, {t0}, {ks}\ns_mul_i32 {t0}, {t0}, 5120")
    a(f"s_add_u32 {t1}, {t0}, 4096")
    a("s_waitcnt vmcnt(0)\ns_barrier")
    fr = [V(4) for _ in range(5)]
    for tl in range(5):
        for uu in range(2):
            o = (64*(tl >> 1) + 8*(tl & 1) if tl < 4 else 128) + uu*4*640
            a(f"ds_read_b64_tr_b16 {fr[tl][2*uu:2*uu+2]}, {a0 if tl<4 else a1} offset:{o}")
    for tl in range(5):
        a(f"buffer_store_dwordx4 {fr[tl]}, {vo}, {rf}, {t0 if tl<4 else t1} offen offset:{1024*(tl&3)}")
    a("s_waitcnt vmcnt(0)" if DIAG else ""); T.flush()
    a("s_endpgm")
    return V.hi


def modvec_load(a, V, rmp, voff, st, col_scale, col_shift):
    r = [[V(2) for _ in range(4)] for _ in range(2)]
    for vi, col in enumerate((col_scale, col_shift)):
        for p in range(4):
            a(f"s_mov_b32 {st}, {p*15360 + col*4}")
            a(f"buffer_load_dwordx2 {r[vi][p]}, {voff}, {rmp}, {st} offen")
    return r
def modvec_finish(a, r, vaddr, ldsoff):
    for vi in range(2):
        x = r[vi]
        a(f"v_pk_add_f32 {x[0]}, {x[0]}, {x[1]}\nv_pk_add_f32 {x[2]}, {x[2]}, {x[3]}\nv_pk_add_f32 {x[0]}, {x[0]}, {x[2]}")
        a(f"v_cvt_pk_bf16_f32 {x[0][0]}, {x[0][0]}, {x[0][1]}")
        if vi == 0:
            a(f"v_and_b32 {x[0][1]}, 0xffff0000, {x[0][0]}\nv_lshlrev_b32 {x[0][0]}, 16, {x[0][0]}")
            a(f"v_add_f32 {x[0][0]}, 1.0, {x[0][0]}\nv_add_f32 {x[0][1]}, 1.0, {x[0][1]}")
            a(f"v_cvt_pk_bf16_f32 {x[0][0]}, {x[0][0]}, {x[0][1]}")
        a(f"ds_write_b32 {vaddr}, {x[0][0]} offset:{ldsoff + 256*vi}")
def scale_ops(frags, baccs, first, sp, sap, msk, tmp, csum=None, one=None):
    o = []
    for i in range(4):
        o.append(f"v_and_b32 {msk[2*i]}, 0xffff, {sp[i]}")
        o.append(f"v_and_b32 {msk[2*i+1]}, 0xffff0000, {sp[i]}")
    for fi, f in enumerate(frags):
        for i in range(4):
            o.append(f"v_dot2_f32_bf16 {tmp[2*i]}, {f[i]}, {msk[2*i]}, 0")
            o.append(f"v_dot2_f32_bf16 {tmp[2*i+1]}, {f[i]}, {msk[2*i+1]}, 0")
        for i in range(4):
            o.append(f"v_dot2_f32_bf16 {baccs[fi]}, {f[i]}, {sap[i]}, {0 if (first and i == 0) else baccs[fi]}")
        for i in range(4):
            o.append(f"v_cvt_pk_bf16_f32 {f[i]}, {tmp[2*i]}, {tmp[2*i+1]}")
        if csum is not None:
            for i in range(4):
                o.append(f"v_dot2_f32_bf16 {csum[fi]}, {f[i]}, {one}, {0 if (first and i == 0) else csum[fi]}")
    return o

NEG = f2u(-1e30)
QSCALE = f2u(20**-0.5 * 1.4426950408889634)
L_WP, L_KV, L_MV, L_BP, L_BF, L_K1END = 0, 81920, 131072, 135168, 137216, 139264
def gen_k1():
    a = Asm()
    S = Alloc('s', 40, 100); V = Alloc('v', 1, 256)
    load_args(a)
    a("s_cmp_ge_u32 s2, 256\ns_cbranch_scc1 Lk1_end")
    T = Stamps(a, 1); T()
    rmp, rwq, rxf, rkv, rfl, rof, rmod = S(4), S(4), S(4), S(4), S(4), S(4), S(4)
    blk, head, wv, st, st2, sxo, swo, hm = S(), S(), S(), S(), S(), S(), S(), S(2)
    lane, l16, t, u, vmv, vmr = V(), V(), V(), V(), V(), V()
    a(f"s_bfe_u32 {blk}, s2, 0x20001\ns_lshl_b32 {blk}, {blk}, 1\ns_lshr_b32 {st}, s2, 7\ns_add_u32 {blk}, {blk}, {st}")
    a(f"s_and_b32 {head}, s2, 1\ns_lshl_b32 {head}, {head}, 4\ns_bfe_u32 {st}, s2, 0x40003\ns_add_u32 {head}, {head}, {st}")
    a(f"v_lshrrev_b32 {t}, 6, v0\nv_and_b32 {lane}, 63, v0\nv_readfirstlane_b32 {wv}, {t}")
    a(f"v_lshlrev_b32 {l16}, 4, {lane}")
    vmo = V()
    a(f"v_lshrrev_b32 {u}, 3, {lane}\nv_lshlrev_b32 {vmo}, 9, {u}\nv_and_b32 {u}, 7, {lane}\nv_lshl_add_u32 {vmo}, {u}, 3, {vmo}\nv_lshl_add_u32 {vmo}, {t}, 6, {vmo}")
    a(f"v_lshlrev_b32 {vmv}, 9, {t}\nv_lshrrev_b32 {u}, 5, {lane}\nv_lshl_add_u32 {vmr}, {u}, 4, {vmv}\nv_lshl_add_u32 {vmv}, {lane}, 2, {vmv}")
    a(f"v_add_u32 {vmr}, {L_MV}, {vmr}\nv_add_u32 {vmv}, {L_MV}, {vmv}")
    a(f"s_mov_b32 {hm[0]}, 0\ns_mov_b32 {hm[1]}, -1")
    a(f"s_lshl_b32 {sxo}, {blk}, 3\ns_add_u32 {sxo}, {sxo}, {wv}\ns_mul_i32 {sxo}, {sxo}, 40960")
    a(f"s_mul_i32 {swo}, {head}, 81920\ns_lshl_b32 {st}, {wv}, 11\ns_add_u32 {swo}, {swo}, {st}")
    a("s_waitcnt lgkmcnt(0)")
    srd(a, rmp, 'ws', WS_MODP, SZ_MODP); srd(a, rwq, 'ws', WS_WQF, SZ_WQF); srd(a, rxf, 'ws', WS_XF, SZ_ACT16)
    X = [V(32) for _ in range(3)]
    raw = [V(8) for _ in range(2)]
    acc = V(32); wp = [V(8) for _ in range(2)]
    sp, sap, msk, tmp, bacc = V(4), V(4), V(8), V(8), V(2)
    mp = modvec_load(a, V, rmp, vmo, st, 640, 0)
    def ld_w(r):
        return [[f"s_add_u32 {st2}, {swo}, {r*16384}", f"buffer_load_dwordx4 {raw[r&1][0:4]}, {l16}, {rwq}, {st2} offen"],
                [f"buffer_load_dwordx4 {raw[r&1][4:8]}, {l16}, {rwq}, {st2} offen offset:1024"]]
    def ld_x(r):
        o = []
        for s_ in range(8):
            g = []
            if s_ % 4 == 0: g.append(f"s_add_u32 {st2}, {sxo}, {(8*r+s_)*1024}")
            g.append(f"buffer_load_dwordx4 {X[r%3][4*s_:4*s_+4]}, {l16}, {rxf}, {st2} offen offset:{(s_%4)*1024}")
            o.append(g)
        return o
    for g in ld_w(0) + ld_x(0) + ld_w(1): a('\n'.join(g))
    srd(a, rkv, 'ws', WS_KV, SZ_KV); srd(a, rfl, 'ws', WS_FLAG, SZ_FLAG); srd(a, rof, 'ws', WS_OF, SZ_ACT16); srd(a, rmod, 'ws', WS_MOD, SZ_MOD)
    modvec_finish(a, mp, vmv, 0)
    for x in mp: V.release(*x)
    V.release(vmo)
    vww = V()
    a(f"v_lshl_add_u32 {vww}, {t}, 11, {l16}")
    vw2 = V()
    a(f"v_add_u32 {vw2}, 65536, {l16}")
    def scale_round(r):
        o = [f"ds_read_b128 {sp}, {vmr} offset:{32*r}", f"ds_read_b128 {sap}, {vmr} offset:{256 + 32*r}"]
        o += scale_ops([raw[r&1][0:4], raw[r&1][4:8]], [bacc[0], bacc[1]], r == 0, sp, sap, msk, tmp)
        if r < 4:
            o += [f"ds_write_b128 {vww}, {raw[r&1][0:4]} offset:{r*16384}", f"ds_write_b128 {vww}, {raw[r&1][4:8]} offset:{r*16384+1024}"]
        else:
            o += [f"v_add_u32 {vww}, 65536, {vww}", f"ds_write_b128 {vww}, {raw[r&1][0:4]}", f"ds_write_b128 {vww}, {raw[r&1][4:8]} offset:1024"]
        return o
    for l in interleave([[x] for x in scale_round(0)], ld_x(1)): a(l)
    def rd_w(ks):
        base, off = (l16, ks*2048) if ks < 32 else (vw2, (ks-32)*2048)
        return [f"ds_read_b128 {wp[ks&1][0:4]}, {base} offset:{off}", f"ds_read_b128 {wp[ks&1][4:8]}, {base} offset:{off+1024}"]
    bias = X[0]
    vbp, vbf = V(), V()
    for r in range(5):
        a("s_waitcnt lgkmcnt(0)\ns_barrier")
        if r in (0, 2): T()
        a('\n'.join(rd_w(8*r)))
        main = []
        for s_ in range(8):
            ks = 8*r + s_
            g = rd_w(ks+1) if s_ < 7 else []
            for tl in range(2):
                c = acc[16*tl:16*tl+16]
                m = f"v_mfma_f32_32x32x16_bf16 {c}, {wp[ks&1][4*tl:4*tl+4]}, {X[r%3][4*s_:4*s_+4]}, {c if ks else 0}"
                main.append(g + [m] if tl == 0 else [m])
        fill = []
        if r < 3:
            fill = interleave([[x] for x in scale_round(r+1)], ld_x(r+2)[:0])
            lds_ = ld_w(r+2) + ld_x(r+2)
            fill = [[x] for x in fill]
            fill = interleave_items(fill, lds_)
        elif r == 3:
            fill = [[x] for x in scale_round(4)]
            fill += [[f"v_permlane32_swap_b32 {bacc[0]}, {bacc[1]}"], [f"v_add_f32 {bacc[0]}, {bacc[0]}, {bacc[1]}"],
                     [f"v_lshlrev_b32 {vbp}, 2, v0"], [f"v_add_u32 {vbp}, {L_BP}, {vbp}"], [f"ds_write_b32 {vbp}, {bacc[0]}"]]
        else:
            fill = [[f"v_lshlrev_b32 {vbf}, 2, {lane}"], [f"v_add_u32 {vbf}, {L_BP}, {vbf}"]]
            fill += [[f"ds_read_b32 {tmp[i]}, {vbf} offset:{256*i}"] for i in range(8)]
            fill += [[f"v_add_f32 {tmp[i]}, {tmp[i]}, {tmp[i+4]}"] for i in range(4)]
            fill += [[f"v_add_f32 {tmp[i]}, {tmp[i]}, {tmp[i+2]}"] for i in range(2)]
            fill += [[f"v_add_f32 {tmp[0]}, {tmp[0]}, {tmp[1]}"], [f"ds_write_b32 {vbp}, {tmp[0]} offset:{L_BF-L_BP}"]]
            fill += [[f"v_lshrrev_b32 {vbf}, 5, {lane}"], [f"v_lshlrev_b32 {vbf}, 4, {vbf}"], [f"v_lshl_add_u32 {vbf}, {t}, 8, {vbf}"], [f"v_add_u32 {vbf}, {L_BF}, {vbf}"]]
            fill += [[f"ds_read_b128 {bias[4*G:4*G+4]}, {vbf} offset:{32*G}"] for G in range(8)]
        for l in interleave(main, fill): a(l)
    T()
    V.release(*wp, *raw, sp, sap, msk, tmp, bacc, vww, vw2, vbp, vbf, vmv, vmr, X[1], X[2])
    Pk = V(16); Q1 = V(2); K1 = V(2); Vt = V(2); cq = V(2); cq2 = V(2); c1 = V()
    vk0, vk1, vv0, vv1 = V(), V(), V(), V()
    a(f"s_mul_i32 {st}, {wv}, 3072\ns_add_u32 {st}, {st}, {L_KV}")
    a(f"v_add_u32 {vk0}, {st}, {l16}")
    a(f"v_lshl_add_u32 {vk1}, {lane}, 3, {st}")
    a(f"v_and_b32 {u}, 31, {lane}\nv_mul_u32_u24 {vv0}, 48, {u}\nv_add_u32 {vv0}, {st}, {vv0}\nv_lshrrev_b32 {u}, 5, {lane}")
    a(f"v_lshlrev_b32 {vv1}, 3, {u}\nv_sub_u32 {vv1}, {vv0}, {vv1}\nv_lshl_add_u32 {vv0}, {u}, 4, {vv0}")
    a(f"v_mov_b32 {cq[0]}, {QSCALE:#x}\nv_cndmask_b32 {cq2[0]}, {cq[0]}, 1.0, {hm}\nv_mov_b32 {c1}, 0x3f80")
    for j in range(16): a(f"v_pk_add_f32 {acc[2*j:2*j+2]}, {acc[2*j:2*j+2]}, {bias[2*j:2*j+2]}")
    for j in range(6): a(f"v_pk_mul_f32 {acc[2*j:2*j+2]}, {acc[2*j:2*j+2]}, {cq if j<4 else cq2} op_sel_hi:[1,0]")
    for j in list(range(6, 16)) + list(range(6)): a(f"v_cvt_pk_bf16_f32 {Pk[j]}, {acc[2*j]}, {acc[2*j+1]}")
    OWN = 8*3072
    a(f"ds_write_b128 {vk0}, {Pk[6:10]} offset:{OWN}")
    a(f"ds_write_b128 {vv0}, {Pk[12:16]} offset:{OWN+1536}")
    a(f"v_cndmask_b32 {K1[0]}, {Pk[10]}, 0, {hm}\nv_cndmask_b32 {K1[1]}, {Pk[11]}, 0, {hm}")
    a(f"v_cndmask_b32 {Vt[0]}, {c1}, {Pk[4]}, {hm}\nv_cndmask_b32 {Vt[1]}, 0, {Pk[5]}, {hm}")
    a(f"ds_write_b64 {vk1}, {K1} offset:{OWN+1024}")
    a(f"ds_write_b64 {vv1}, {Vt} offset:{OWN+1536+40}")
    a(f"v_cndmask_b32 {Q1[0]}, {Pk[4]}, {c1}, {hm}\nv_cndmask_b32 {Q1[1]}, {Pk[5]}, 0, {hm}")
    Q0 = Pk[0:4]
    pub = bias[0:12]
    for i in range(3): a(f"ds_read_b128 {pub[4*i:4*i+4]}, {vk0} offset:{OWN+1024*i}")
    sid, skv, sfl = S(), S(), S()
    a(f"s_lshl_b32 {sid}, {blk}, 5\ns_add_u32 {sid}, {sid}, {head}")
    a(f"s_lshl_b32 {skv}, {sid}, 3\ns_add_u32 {skv}, {skv}, {wv}\ns_mul_i32 {skv}, {skv}, 3072")
    a(f"s_lshl_b32 {sfl}, {sid}, 7\ns_lshl_b32 {st2}, {wv}, 2\ns_add_u32 {sfl}, {sfl}, {st2}")
    for i in range(3): a(f"buffer_store_dwordx4 {pub[4*i:4*i+4]}, {l16}, {rkv}, {skv} offen offset:{1024*i} sc1")
    V.release(acc, K1, Vt, cq, cq2, vv0, vv1)
    Sx = [V(16) for _ in range(9)]
    cm = S(2); vneg = V()
    a(f"v_and_b32 {t}, 31, {lane}\nv_lshrrev_b32 {u}, 5, {lane}\nv_lshlrev_b32 {u}, 2, {u}\nv_sub_u32 {t}, {t}, {u}\nv_mov_b32 {vneg}, {NEG:#x}")
    for r in range(16):
        cr = (r & 3) + 8*(r >> 2)
        a(f"v_cmp_gt_i32 {cm}, {cr}, {t}")
        a(f"v_cndmask_b32 {Sx[0][r]}, {vneg}, 0, {cm}\nv_cndmask_b32 {Sx[8][r]}, 0, {vneg}, {cm}")
    z = V(); one = V()
    a(f"v_mov_b32 {z}, 0\nv_mov_b32 {one}, 1")
    a("s_waitcnt vmcnt(0)")
    a(f"buffer_store_dword {one}, {z}, {rfl}, {sfl} offen sc1")
    T()
    a("s_cmp_lt_u32 s2, 8\ns_cbranch_scc0 Lk1_nomod\n@save")
    a(f"s_lshl_b32 {st}, s2, 11\nv_lshl_add_u32 {u}, v0, 2, {st}")
    for p in range(4):
        a(f"s_mov_b32 {st}, {p*15360}\nbuffer_load_dword {pub[p]}, {u}, {rmp}, {st} offen")
    a(f"v_add_f32 {pub[0]}, {pub[0]}, {pub[1]}\nv_add_f32 {pub[2]}, {pub[2]}, {pub[3]}\nv_add_f32 {pub[0]}, {pub[0]}, {pub[2]}")
    a(f"v_cvt_pk_bf16_f32 {pub[0]}, 0, {pub[0]}")
    a(f"buffer_store_dword {pub[0]}, {u}, {rmod}, 0 offen\ns_waitcnt vmcnt(0)\n@restore")
    a("Lk1_nomod:")
    a(f"s_cmp_eq_u32 {blk}, 0\ns_cbranch_scc1 Lk1_first")
    a(f"s_sub_u32 {skv}, {skv}, {32*8*3072}\ns_sub_u32 {sfl}, {sfl}, {32*128}\ns_mov_b32 {st2}, 0")
    a("Lk1_poll:")
    a(f"buffer_load_dword {one}, {z}, {rfl}, {sfl} offen sc1\ns_waitcnt vmcnt(0)\nv_readfirstlane_b32 {st}, {one}")
    a(f"s_add_u32 {st2}, {st2}, 1\ns_cmp_gt_u32 {st2}, 0x40000\ns_cbranch_scc1 Lk1_got")
    a(f"s_cmp_eq_u32 {st}, 1\ns_cbranch_scc0 Lk1_poll")
    a("Lk1_got:")
    for i in range(3): a(f"buffer_load_dwordx4 {pub[4*i:4*i+4]}, {l16}, {rkv}, {skv} offen offset:{1024*i} sc1")
    a("s_waitcnt vmcnt(0)\ns_branch Lk1_wr")
    a("Lk1_first:")
    for i in range(12): a(f"v_mov_b32 {pub[i]}, 0")
    a(f"s_mov_b32 {cm[0]}, 0xffff0000\ns_mov_b32 {cm[1]}, 0\nv_mov_b32 {u}, {NEG>>16:#x}")
    a(f"v_cndmask_b32 {pub[4]}, 0, {u}, {cm}\nv_cndmask_b32 {pub[6]}, 0, {u}, {cm}")
    a("Lk1_wr:\n@reset")
    for i in range(3): a(f"ds_write_b128 {vk0}, {pub[4*i:4*i+4]} offset:{1024*i}")
    vtr = V()
    a(f"v_lshrrev_b32 {t}, 5, {lane}\nv_bfe_u32 {u}, {lane}, 2, 2\nv_lshl_add_u32 {t}, {t}, 2, {u}\nv_mul_u32_u24 {vtr}, 48, {t}")
    a(f"v_bfe_u32 {t}, {lane}, 4, 1\nv_and_b32 {u}, 3, {lane}\nv_lshl_add_u32 {t}, {t}, 2, {u}\nv_lshlrev_b32 {t}, 2, {t}")
    a(f"s_mov_b32 {st2}, {nib([0,2,1,3,4,5,5,5]):#x}\nv_bfe_u32 {t}, {st2}, {t}, 4\nv_lshl_add_u32 {vtr}, {t}, 3, {vtr}")
    a(f"s_mul_i32 {st}, {wv}, 3072\ns_add_u32 {st}, {st}, {L_KV+1536}\nv_add_u32 {vtr}, {st}, {vtr}")
    a("s_waitcnt lgkmcnt(0)\ns_barrier")
    T()
    kf = [bias[6*i:6*i+6] for i in range(4)]
    def rd_k(tl): return [f"ds_read_b128 {kf[tl%4][0:4]}, {vk0} offset:{tl*3072}", f"ds_read_b64 {kf[tl%4][4:6]}, {vk1} offset:{tl*3072+1024}"]
    mx = V(2)
    def max_ops(tl):
        o = []
        for j in range(8):
            m = mx[j & 1]
            if tl == 0 and j < 2: o.append(f"v_max_f32 {m}, {Sx[tl][2*j]}, {Sx[tl][2*j+1]}")
            else: o.append(f"v_max3_f32 {m}, {Sx[tl][2*j]}, {Sx[tl][2*j+1]}, {m}")
        return o
    a('\n'.join(rd_k(0) + rd_k(1) + rd_k(2)))
    for tl in range(9):
        if tl + 3 < 9: a('\n'.join(rd_k(tl+3)))
        c = Sx[tl] if tl in (0, 8) else 0
        mo = max_ops(tl-2) if tl >= 2 else []
        a(f"v_mfma_f32_32x32x16_bf16 {Sx[tl]}, {kf[tl%4][0:4]}, {Q0}, {c}")
        a('\n'.join(mo[:4]))
        a(f"v_mfma_f32_32x32x8bf16_1k {Sx[tl]}, {kf[tl%4][4:6]}, {Q1}, {Sx[tl]}")
        a('\n'.join(mo[4:]))
    vf = [bias[8*i:8*i+8] for i in range(3)]
    def rd_v(tl): return [f"ds_read_b64_tr_b16 {vf[tl%3][2*q:2*q+2]}, {vtr} offset:{tl*3072 + q*8*48}" for q in range(4)]
    a('\n'.join(max_ops(7)))
    a('\n'.join(rd_v(0) + rd_v(1)))
    a('\n'.join(max_ops(8)))
    a(f"v_max_f32 {mx[0]}, {mx[0]}, {mx[1]}\nv_mov_b32 {mx[1]}, {mx[0]}\nv_permlane32_swap_b32 {mx[0]}, {mx[1]}\nv_max_f32 {mx[0]}, {mx[0]}, {mx[1]}")
    O = V(16)
    def pv(tl): return [f"v_mfma_f32_32x32x16_bf16 {O}, {vf[tl%3][4*s_:4*s_+4]}, {Sx[tl][4*s_:4*s_+4]}, {O if (tl or s_) else 0}" for s_ in range(2)]
    for tl in range(9):
        s_ = Sx[tl]
        ops = [f"v_pk_add_f32 {s_[2*j:2*j+2]}, {s_[2*j:2*j+2]}, {mx} op_sel_hi:[1,0] neg_lo:[0,1] neg_hi:[0,1]" for j in range(8)]
        ops += [f"v_exp_f32 {s_[j]}, {s_[j]}" for j in range(16)]
        ops += [f"v_cvt_pk_bf16_f32 {s_[j]}, {s_[2*j]}, {s_[2*j+1]}" for j in range(8)]
        if tl >= 1:
            p = pv(tl-1); ops.insert(4, p[0]); ops.insert(14, p[1])
            if tl + 1 < 9: ops[18:18] = rd_v(tl+1)
        a('\n'.join(ops))
    a('\n'.join(pv(8)))
    vo = V()
    a(f"v_bfe_u32 {t}, {lane}, 4, 1\nv_mul_u32_u24 {vo}, 20480, {t}\nv_and_b32 {u}, 15, {lane}\nv_lshl_add_u32 {vo}, {u}, 4, {vo}")
    a(f"v_lshrrev_b32 {u}, 5, {lane}\nv_lshl_add_u32 {t}, {u}, 8, {vo}")
    a(f"s_lshr_b32 {st}, {head}, 1\ns_mul_i32 {st}, {st}, 1280\ns_add_u32 {st}, {st}, {sxo}\ns_and_b32 {sid}, {head}, 1")
    a(f"s_lshl_b32 {st2}, {sid}, 3\ns_add_u32 {st2}, {st2}, {st}\ns_mul_i32 {sid}, {sid}, 768\ns_add_u32 {st}, {st}, {sid}")
    a(f"v_rcp_f32 {mx[0]}, {O[12]}")
    for j in range(6): a(f"v_pk_mul_f32 {O[2*j:2*j+2]}, {O[2*j:2*j+2]}, {mx} op_sel_hi:[1,0]")
    for j in range(6): a(f"v_cvt_pk_bf16_f32 {O[j]}, {O[2*j]}, {O[2*j+1]}")
    a(f"buffer_store_dwordx4 {O[0:4]}, {t}, {rof}, {st} offen")
    a(f"s_mov_b32 exec_hi, 0")
    a(f"buffer_store_dwordx2 {O[4:6]}, {vo}, {rof}, {st2} offen offset:512")
    T(); a("s_waitcnt vmcnt(0)" if DIAG else ""); T.flush()
    a("Lk1_end:\ns_endpgm")
    return dict(name='k1_kernel', lines=finish(a), vgpr=V.hi, agpr=0, grid=256, block=512, lds=L_K1END)

def interleave_items(a_items, b_items):
    out = []; n = len(a_items); m = len(b_items); k = 0
    for i, g in enumerate(a_items):
        out.append(g)
        tgt = (i + 1) * m // n
        while k < tgt: out.append(b_items[k]); k += 1
    return out


def role_wg(a, sid):
    T = Stamps(a, 2); T()
    S = Alloc('s', 60, 100); V = Alloc('v', 1, 128)
    rw, rf, rmp, rup = S(4), S(4), S(4), S(4)
    ksp, cgp, wv, t0, t1 = S(), S(), S(), S(), S()
    lane, t, u, voff, vmo, vmv, vmr = V(), V(), V(), V(), V(), V(), V()
    a(f"s_and_b32 {ksp}, {sid}, 7\ns_lshr_b32 {cgp}, {sid}, 3")
    a(f"v_lshrrev_b32 {t}, 6, v0\nv_and_b32 {lane}, 63, v0\nv_readfirstlane_b32 {wv}, {t}")
    a(f"v_lshrrev_b32 {u}, 3, {lane}\nv_mul_u32_u24 {voff}, 3456, {u}\nv_and_b32 {u}, 7, {lane}\nv_lshl_add_u32 {voff}, {u}, 4, {voff}")
    a(f"s_mul_i32 {t0}, {ksp}, 320\nv_lshl_add_u32 {vmo}, {lane}, 3, {t0}")
    LMV = 20480
    a(f"v_lshlrev_b32 {vmv}, 9, {t}\nv_lshrrev_b32 {u}, 5, {lane}\nv_lshl_add_u32 {vmr}, {u}, 4, {vmv}\nv_lshl_add_u32 {vmv}, {lane}, 2, {vmv}")
    a("s_waitcnt lgkmcnt(0)")
    a(f"s_cmp_lt_u32 {wv}, 2\ns_cselect_b32 {rw[0]}, s{P['wg']}, s{P['wu']}\ns_cselect_b32 {rw[1]}, s{P['wg']+1}, s{P['wu']+1}")
    a(f"s_mov_b32 {rw[2]}, {640*1728*2:#x}\ns_mov_b32 {rw[3]}, 0x20000")
    a(f"s_and_b32 {t1}, {wv}, 1\ns_mul_i32 {t1}, {t1}, {40*3456}\ns_mul_i32 {t0}, {ksp}, {80*3456}\ns_add_u32 {t0}, {t0}, {t1}\ns_lshl_b32 {t1}, {cgp}, 7\ns_add_u32 {t0}, {t0}, {t1}")
    a(f"s_mul_i32 {t1}, {wv}, 5120")
    for i in range(5):
        a(f"s_add_u32 m0, {t1}, {1024*i}")
        a(f"buffer_load_dwordx4 {voff}, {rw}, {t0} offen lds")
        if i < 4: a(f"s_add_u32 {t0}, {t0}, {8*3456}")
    srd(a, rmp, 'ws', WS_MODP, SZ_MODP)
    mp = modvec_load(a, V, rmp, vmo, t0, 4*640, 3*640)
    srd(a, rf, 'ws', WS_WGF, SZ_WGF); srd(a, rup, 'ws', WS_UP, SZ_UP)
    vtr, vo, one = V(), V(), V()
    a(f"v_lshrrev_b32 {t}, 5, {lane}\nv_bfe_u32 {u}, {lane}, 2, 2\nv_lshl_add_u32 {t}, {t}, 3, {u}\nv_lshlrev_b32 {vtr}, 7, {t}")
    a(f"v_bfe_u32 {t}, {lane}, 4, 1\nv_mul_u32_u24 {t}, 10240, {t}\nv_add_u32 {vtr}, {vtr}, {t}")
    a(f"v_and_b32 {t}, 1, {lane}\nv_lshl_add_u32 {vtr}, {t}, 4, {vtr}\nv_bfe_u32 {t}, {lane}, 1, 1\nv_lshl_add_u32 {vtr}, {t}, 3, {vtr}")
    a(f"s_lshl_b32 {t1}, {wv}, 5\nv_add_u32 {vtr}, {t1}, {vtr}")
    a(f"v_lshlrev_b32 {vo}, 4, {lane}\nv_mov_b32 {one}, {ONES_BF:#x}")
    modvec_finish(a, mp, vmv, LMV)
    a("s_waitcnt vmcnt(0)\ns_barrier")
    fr = [V(4) for _ in range(5)]; sp = [V(4) for _ in range(5)]; sap = [V(4) for _ in range(5)]
    msk, tmp, acc = V(8), V(8), V(2)
    for k in range(5):
        for uu in range(2): a(f"ds_read_b64_tr_b16 {fr[k][2*uu:2*uu+2]}, {vtr} offset:{(16*k+4*uu)*128}")
        a(f"ds_read_b128 {sp[k]}, {vmr} offset:{LMV+32*k}\nds_read_b128 {sap[k]}, {vmr} offset:{LMV+256+32*k}")
    a(f"s_lshl_b32 {t0}, {cgp}, 2\ns_add_u32 {t0}, {t0}, {wv}\ns_mul_i32 {t1}, {ksp}, 108\ns_add_u32 {t1}, {t1}, {t0}\ns_lshl_b32 {t1}, {t1}, 8")
    a(f"s_mul_i32 {t0}, {t0}, 40960\ns_mul_i32 {cgp}, {ksp}, 5120\ns_add_u32 {t0}, {t0}, {cgp}\ns_add_u32 {cgp}, {t0}, 4096")
    for k in range(5):
        a('\n'.join(scale_ops([fr[k]], [acc[1]], k == 0, sp[k], sap[k], msk, tmp, [acc[0]], one)))
        a(f"buffer_store_dwordx4 {fr[k]}, {vo}, {rf}, {t0 if k<4 else cgp} offen offset:{1024*(k&3)}")
    a(f"v_permlane32_swap_b32 {acc[0]}, {acc[1]}\nv_add_f32 {acc[0]}, {acc[0]}, {acc[1]}\nv_lshlrev_b32 {vo}, 2, {lane}")
    a(f"buffer_store_dword {acc[0]}, {vo}, {rup}, {t1} offen")
    a("s_waitcnt vmcnt(0)" if DIAG else ""); T.flush()
    a("s_endpgm")
    return V.hi

def gen_narrow(name, NK, kind):
    a = Asm()
    S = Alloc('s', 40, 100); V = Alloc('v', 1, 256)
    load_args(a)
    extra = 216 if kind == 'wo' else 0
    a(f"s_cmp_ge_u32 s2, 256\ns_cbranch_scc1 L{name}_other")
    T = Stamps(a, 2 if kind == 'wo' else 4); T()
    rx, rw, rm, rr, ro, rs = S(4), S(4), S(4), S(4), S(4), S(4)
    rb, cb, wv, st, st2, sxo, swo, slds = S(), S(), S(), S(), S(), S(), S(), S()
    lane, l16, t, u = V(), V(), V(), V()
    a(f"s_bfe_u32 {rb}, s2, 0x20001\ns_lshl_b32 {rb}, {rb}, 3\ns_lshr_b32 {st}, s2, 5\ns_add_u32 {rb}, {rb}, {st}")
    a(f"s_and_b32 {cb}, s2, 1\ns_lshl_b32 {cb}, {cb}, 2\ns_bfe_u32 {st}, s2, 0x20003\ns_add_u32 {cb}, {cb}, {st}")
    a(f"v_lshrrev_b32 {t}, 6, v0\nv_and_b32 {lane}, 63, v0\nv_readfirstlane_b32 {wv}, {t}")
    a(f"v_lshlrev_b32 {l16}, 4, {lane}")
    a(f"s_lshl_b32 {sxo}, {rb}, 2\ns_add_u32 {sxo}, {sxo}, {wv}\ns_mul_i32 {sxo}, {sxo}, {NK*1024}")
    a(f"s_mul_i32 {slds}, {wv}, 5120\ns_mul_i32 {swo}, {cb}, {NK*5120}\ns_add_u32 {swo}, {swo}, {slds}")
    a("s_waitcnt lgkmcnt(0)")
    if kind == 'wo':
        srd(a, rx, 'ws', WS_OF, SZ_ACT16); srd(a, rw, 'ws', WS_WOF, SZ_WOF)
    else:
        srd(a, rx, 'ws', WS_ACTF, SZ_ACTF); srd(a, rw, 'ws', WS_WDF, SZ_WDF)
    D = 3; NSL = 4
    nst = (NK + 3)//4
    X = [V(16) for _ in range(D+1)]
    wf = [V(20) for _ in range(2)]
    acc = V(20)
    def loads(i):
        o = []
        for c in range(5):
            g = []
            if c in (0, 4):
                g += [f"s_add_u32 {st2}, {swo}, {i*20480 + c*1024}", f"s_add_u32 m0, {slds}, {(i%NSL)*20480 + c*1024}"]
            g += [f"@tag w{i}", f"buffer_load_dwordx4 {l16}, {rw}, {st2} offen offset:{(c&3)*1024} lds"]
            o.append(g)
        for k in range(min(4, NK - 4*i)):
            g = [f"s_add_u32 {st2}, {sxo}, {i*4096}"] if k == 0 else []
            g.append(f"buffer_load_dwordx4 {X[i%(D+1)][4*k:4*k+4]}, {l16}, {rx}, {st2} offen offset:{k*1024}")
            o.append(g)
        return o
    for i in range(D):
        for g in loads(i): a('\n'.join(g))
    gm = V(20); xr = V(10); vrm, vrm2, vfr, vfr2, vg, vg2 = V(), V(), V(), V(), V(), V()
    srd(a, rm, 'ws', WS_MOD, SZ_MOD)
    srd(a, rr, 'x' if kind == 'wo' else 'out', 0, SZ_ACT16)
    srd(a, ro, 'ws', WS_X1F, SZ_ACT16)
    if kind == 'wo': srd(a, rs, 'ws', WS_ST2, SZ_ST2)
    srm, sfr, sg = S(), S(), S()
    a(f"v_lshrrev_b32 {t}, 4, {lane}\nv_and_b32 {u}, 15, {lane}")
    a(f"v_mul_u32_u24 {vrm2}, 1280, {u}\nv_lshl_add_u32 {vrm}, {t}, 4, {vrm2}\nv_lshl_add_u32 {vrm2}, {t}, 3, {vrm2}")
    a(f"v_lshlrev_b32 {vfr2}, 4, {u}\nv_lshl_add_u32 {vfr}, {t}, 9, {vfr2}")
    a(f"v_lshlrev_b32 {vg}, 5, {t}\nv_lshlrev_b32 {vg2}, 4, {t}")
    a(f"v_lshrrev_b32 {u}, 1, {t}\nv_lshl_add_u32 {vfr2}, {u}, 9, {vfr2}\nv_and_b32 {u}, 1, {t}\nv_lshl_add_u32 {vfr2}, {u}, 3, {vfr2}")
    a(f"s_lshl_b32 {srm}, {rb}, 2\ns_add_u32 {srm}, {srm}, {wv}\ns_mul_i32 {srm}, {srm}, {16*1280}\ns_mul_i32 {st}, {cb}, 160\ns_add_u32 {srm}, {srm}, {st}")
    a(f"s_lshr_b32 {st}, {wv}, 1\ns_lshl_b32 {sfr}, {rb}, 1\ns_add_u32 {sfr}, {sfr}, {st}\ns_mul_i32 {sfr}, {sfr}, 40960\ns_mul_i32 {st}, {cb}, 5120\ns_add_u32 {sfr}, {sfr}, {st}")
    a(f"s_and_b32 {st}, {wv}, 1\ns_lshl_b32 {st}, {st}, 8\ns_add_u32 {sfr}, {sfr}, {st}")
    a(f"s_mul_i32 {sg}, {cb}, 320\ns_add_u32 {sg}, {sg}, {(2 if kind=='wo' else 5)*2560}")
    sfr2 = S(); a(f"s_add_u32 {sfr2}, {sfr}, 4096")
    epi = [[f"buffer_load_dwordx4 {gm[4*q:4*q+4]}, {vg}, {rm}, {sg} offen offset:{128*(q>>1) + 16*(q&1)}"] for q in range(4)]
    epi.append([f"buffer_load_dwordx4 {gm[16:20]}, {vg2}, {rm}, {sg} offen offset:256"])
    def rowmaj(op, regs): return [[f"buffer_{op}_dwordx4 {regs[0:4]}, {vrm}, {rr}, {srm} offen"], [f"buffer_{op}_dwordx4 {regs[4:8]}, {vrm}, {rr}, {srm} offen offset:64"], [f"buffer_{op}_dwordx2 {regs[8:10]}, {vrm2}, {rr}, {srm} offen offset:128"]]
    def fragmaj(op, regs): return [[f"buffer_{op}_dwordx4 {regs[0:4]}, {vfr}, {ro}, {sfr} offen"], [f"buffer_{op}_dwordx4 {regs[4:8]}, {vfr}, {ro}, {sfr} offen offset:2048"], [f"buffer_{op}_dwordx2 {regs[8:10]}, {vfr2}, {ro}, {sfr2} offen"]]
    epi += rowmaj('load', xr) if kind == 'wo' else fragmaj('load', xr)
    vw2 = V(); a(f"v_add_u32 {vw2}, 40960, {l16}")
    def rd_w(ks):
        i, k = divmod(ks, 4); off = (i % NSL)*20480 + k*5120
        base = l16
        if off >= 40960: base, off = vw2, off - 40960
        return [f"ds_read_b128 {wf[ks&1][4*c:4*c+4]}, {base} offset:{off + c*1024}" for c in range(5)]
    for i in range(nst):
        if i == 0: T()
        a(f"@waitvm w{i}\ns_barrier")
        if i in (0, nst//2): T()
        nk = min(4, NK - 4*i)
        a('\n'.join(rd_w(4*i)))
        main = []
        for k in range(nk):
            ks = 4*i + k
            nx = rd_w(ks+1) if k + 1 < nk else [None]*5
            for c in range(5):
                cc = acc[4*c:4*c+4]
                g = [nx[c]] if nx[c] else []
                main.append(g + [f"v_mfma_f32_16x16x32_bf16 {cc}, {wf[ks&1][4*c:4*c+4]}, {X[i%(D+1)][4*k:4*k+4]}, {cc if ks else 0}"])
        fill = loads(i+D) if i + D < nst else (epi if i + D == nst else [])
        for l in interleave(main, fill): a(l)
    T()
    f = wf[0]
    for j in range(10): a(f"v_lshlrev_b32 {f[2*j]}, 16, {xr[j]}\nv_and_b32 {f[2*j+1]}, 0xffff0000, {xr[j]}")
    for j in range(10): a(f"v_pk_fma_f32 {f[2*j:2*j+2]}, {acc[2*j:2*j+2]}, {gm[2*j:2*j+2]}, {f[2*j:2*j+2]}")
    for j in range(10): a(f"v_cvt_pk_bf16_f32 {xr[j]}, {f[2*j]}, {f[2*j+1]}")
    for g in (fragmaj('store', xr) if kind == 'wo' else rowmaj('store', xr)): a('\n'.join(g))
    if kind == 'wo':
        one, sm, sq = V(), V(), V()
        a(f"v_mov_b32 {one}, {ONES_BF:#x}")
        for j in range(10):
            a(f"v_dot2_f32_bf16 {sm}, {xr[j]}, {one}, {sm if j else 0}\nv_dot2_f32_bf16 {sq}, {xr[j]}, {xr[j]}, {sq if j else 0}")
        a(f"v_and_b32 {u}, 15, {lane}\nv_lshlrev_b32 {u}, 6, {u}\nv_lshrrev_b32 {t}, 5, {lane}\nv_lshl_add_u32 {u}, {t}, 2, {u}")
        a(f"s_lshl_b32 {st}, {rb}, 2\ns_add_u32 {st}, {st}, {wv}\ns_lshl_b32 {st}, {st}, 10\ns_lshl_b32 {st2}, {cb}, 3\ns_add_u32 {st}, {st}, {st2}")
        a(f"v_permlane32_swap_b32 {sm}, {sq}\nv_add_f32 {sm}, {sm}, {sq}\nv_mov_b32 {sq}, {sm}\nv_permlane16_swap_b32 {sm}, {sq}\nv_add_f32 {sm}, {sm}, {sq}")
        a(f"buffer_store_dword {sm}, {u}, {rs}, {st} offen")
    T(); a("s_waitcnt vmcnt(0)" if DIAG else ""); T.flush()
    a("s_endpgm")
    lines = auto_wait(a.lines)
    b = Asm(); b.label(f"L{name}_other"); hi = V.hi
    if extra:
        b(f"s_sub_u32 s3, s2, 256\ns_cmp_lt_u32 s3, {extra}\ns_cbranch_scc1 L{name}_wg\ns_endpgm\nL{name}_wg:")
        hi = max(hi, role_wg(b, Reg('s', 3)))
    else: b("s_endpgm")
    lines += auto_wait(b.lines)
    lines, _ = fix_hazards(lines)
    return dict(name=name + '_kernel', lines=lines, vgpr=hi, agpr=0, grid=256 + extra, block=256, lds=NSL*20480)

def gen_k3():
    a = Asm()
    S = Alloc('s', 40, 100); V = Alloc('v', 1, 256)
    load_args(a)
    a("s_cmp_ge_u32 s2, 256\ns_cbranch_scc1 Lk3_end")
    T = Stamps(a, 3); T()
    rx, rw, ru, rs, ro = S(4), S(4), S(4), S(4), S(4)
    rb, cb, u0, wv, st, st2, sxo, swo, slds = S(), S(), S(), S(), S(), S(), S(), S(), S()
    lane, l16, t, u = V(), V(), V(), V()
    a(f"s_and_b32 {rb}, s2, 1\ns_lshl_b32 {rb}, {rb}, 3\ns_lshr_b32 {st}, s2, 5\ns_add_u32 {rb}, {rb}, {st}")
    a(f"s_bfe_u32 {cb}, s2, 0x20001\ns_lshl_b32 {cb}, {cb}, 2\ns_bfe_u32 {st}, s2, 0x20003\ns_add_u32 {cb}, {cb}, {st}")
    a(f"s_mul_i32 {u0}, {cb}, 7\ns_mul_i32 {st}, {cb}, 6\ns_add_u32 {st}, {st}, 11\ns_min_u32 {u0}, {u0}, {st}")
    a(f"v_lshrrev_b32 {t}, 6, v0\nv_and_b32 {lane}, 63, v0\nv_readfirstlane_b32 {wv}, {t}")
    a(f"v_lshlrev_b32 {l16}, 4, {lane}")
    a(f"s_lshl_b32 {sxo}, {rb}, 2\ns_add_u32 {sxo}, {sxo}, {wv}\ns_mul_i32 {sxo}, {sxo}, 40960")
    a(f"s_mul_i32 {slds}, {wv}, 7168\ns_mul_i32 {swo}, {u0}, 40960\ns_lshl_b32 {st}, {wv}, 10\ns_add_u32 {swo}, {swo}, {st}")
    a("s_waitcnt lgkmcnt(0)")
    srd(a, rx, 'ws', WS_X1F, SZ_ACT16); srd(a, rw, 'ws', WS_WGF, SZ_WGF)
    D = 3; NSL = 4; nst = 10; SL = 28672; L_U = NSL*SL
    X = [V(16) for _ in range(D+1)]
    wf = [V(28) for _ in range(2)]
    acc = V(112)
    def loads(i):
        o = []
        for c in range(7):
            o.append([f"s_add_u32 {st2}, {swo}, {c*40960 + i*4096}", f"s_add_u32 m0, {slds}, {(i%NSL)*SL + c*1024}",
                      f"@tag w{i}", f"buffer_load_dwordx4 {l16}, {rw}, {st2} offen lds"])
        for k in range(4):
            g = [f"s_add_u32 {st2}, {sxo}, {i*4096}"] if k == 0 else []
            g.append(f"buffer_load_dwordx4 {X[i%(D+1)][4*k:4*k+4]}, {l16}, {rx}, {st2} offen offset:{k*1024}")
            o.append(g)
        return o
    for i in range(D):
        for g in loads(i): a('\n'.join(g))
    srd(a, ru, 'ws', WS_UP, SZ_UP); srd(a, rs, 'ws', WS_ST2, SZ_ST2); srd(a, ro, 'ws', WS_ACTF, SZ_ACTF)
    vw2 = V(); a(f"v_add_u32 {vw2}, {2*SL}, {l16}")
    vu, vs_, mr, rstd = V(), V(), V(2), V(2)
    a(f"v_lshlrev_b32 {vu}, 3, v0\nv_and_b32 {vs_}, 31, {lane}\nv_lshlrev_b32 {vs_}, 6, {vs_}")
    def rd_w(ks):
        i, k = divmod(ks, 4); off = (i % NSL)*SL + k*7168
        base = l16
        if off >= 2*SL: base, off = vw2, off - 2*SL
        return [f"ds_read_b128 {wf[ks&1][4*c:4*c+4]}, {base} offset:{off + c*1024}" for c in range(7)]
    UPR = X[(7+D) % (D+1)]; STR = X[(8+D) % (D+1)]
    for i in range(nst):
        if i == 0: T()
        a(f"@waitvm w{i}")
        if i == 9: a("s_waitcnt lgkmcnt(0)")
        a("s_barrier")
        if i in (0, 5): T()
        a('\n'.join(rd_w(4*i)))
        main = []
        for k in range(4):
            ks = 4*i + k
            nx = rd_w(ks+1) if k < 3 else [None]*7
            for c in range(7):
                cc = acc[16*c:16*c+16]
                g = [nx[c]] if nx[c] else []
                main.append(g + [f"v_mfma_f32_32x32x16_bf16 {cc}, {wf[ks&1][4*c:4*c+4]}, {X[i%(D+1)][4*k:4*k+4]}, {cc if ks else 0}"])
        if i + D < nst: fill = loads(i+D)
        elif i == 7:
            fill = [[f"s_lshl_b32 {st}, {u0}, 8"]]
            fill += [[f"s_add_u32 {st2}, {st}, {p*108*256}", f"buffer_load_dwordx2 {UPR[2*p:2*p+2]}, {vu}, {ru}, {st2} offen"] for p in range(8)]
        elif i == 8:
            fill = [[f"s_lshl_b32 {st}, {rb}, 2", f"s_add_u32 {st}, {st}, {wv}", f"s_lshl_b32 {st}, {st}, 11"]]
            fill += [[f"buffer_load_dwordx4 {STR[4*p:4*p+4]}, {vs_}, {rs}, {st} offen offset:{16*p}"] for p in range(4)]
            fill += [[]]*8
            fill += [[f"v_pk_add_f32 {UPR[2*p:2*p+2]}, {UPR[2*p:2*p+2]}, {UPR[2*p+8:2*p+10]}"] for p in range(4)]
            fill += [[f"v_pk_add_f32 {UPR[2*p:2*p+2]}, {UPR[2*p:2*p+2]}, {UPR[2*p+4:2*p+6]}"] for p in range(2)]
            fill += [[f"v_pk_add_f32 {UPR[0:2]}, {UPR[0:2]}, {UPR[2:4]}"], [f"v_add_u32 {vu}, {L_U}, {vu}"], [f"ds_write_b64 {vu}, {UPR[0:2]}"]]
        else:
            fill = [[]]*6
            fill += [[f"v_pk_add_f32 {STR[2*p:2*p+2]}, {STR[2*p:2*p+2]}, {STR[2*p+8:2*p+10]}"] for p in range(4)]
            fill += [[f"v_pk_add_f32 {STR[2*p:2*p+2]}, {STR[2*p:2*p+2]}, {STR[2*p+4:2*p+6]}"] for p in range(2)]
            fill += [[f"v_pk_add_f32 {STR[0:2]}, {STR[0:2]}, {STR[2:4]}"]]
            fill += [[f"v_mul_f32 {STR[0]}, {f2u(1/640):#x}, {STR[0]}"], [f"v_mov_b32 {STR[2]}, {f2u(1e-5):#x}"],
                     [f"v_fmac_f32 {STR[2]}, {f2u(1/640):#x}, {STR[1]}"], [f"v_fma_f32 {STR[2]}, -{STR[0]}, {STR[0]}, {STR[2]}"],
                     [f"v_rsq_f32 {rstd[0]}, {STR[2]}"], [f"v_lshrrev_b32 {vu}, 5, {lane}"], [f"v_mul_f32 {mr[0]}, {STR[0]}, {rstd[0]}"],
                     [f"v_lshlrev_b32 {vu}, 4, {vu}"], [f"v_add_u32 {vu}, {L_U}, {vu}"]]
        for l in interleave(main, fill): a(l)
    T()
    vo = V(); nl = V(2); onep = V(2)
    a(f"v_bfe_u32 {t}, {lane}, 4, 1\nv_mul_u32_u24 {vo}, 55296, {t}\nv_and_b32 {u}, 15, {lane}\nv_lshl_add_u32 {vo}, {u}, 4, {vo}\nv_lshrrev_b32 {u}, 5, {lane}\nv_lshl_add_u32 {vo}, {u}, 8, {vo}")
    a(f"s_lshl_b32 {st}, {rb}, 2\ns_add_u32 {st}, {st}, {wv}\ns_mul_i32 {st}, {st}, {2*55296}\ns_lshl_b32 {st2}, {u0}, 9\ns_add_u32 {st}, {st}, {st2}")
    a(f"v_mov_b32 {nl[0]}, {LOG2E | 0x80000000:#x}\nv_mov_b32 {onep[0]}, 1.0")
    ub = [Reg('v', X[0].idx, 32), Reg('v', X[2].idx, 32)]
    assert X[1].idx == X[0].idx + 16 and X[3].idx == X[2].idx + 16
    def rd_u(c): return [f"ds_read_b128 {ub[c&1][4*q:4*q+4]}, {vu} offset:{c*256 + (q>>2)*128 + (q&3)*32}" for q in range(8)]
    e = wf[0]
    a('\n'.join(rd_u(0)))
    for c in range(7):
        if c < 6: a('\n'.join(rd_u(c+1)))
        U = ub[c&1]; A = acc[16*c:16*c+16]
        for j in range(8): a(f"v_pk_fma_f32 {U[16+2*j:18+2*j]}, {U[2*j:2*j+2]}, {mr}, {U[16+2*j:18+2*j]} op_sel_hi:[1,0,1] neg_lo:[0,1,0] neg_hi:[0,1,0]")
        for j in range(8): a(f"v_pk_fma_f32 {A[2*j:2*j+2]}, {A[2*j:2*j+2]}, {rstd}, {U[16+2*j:18+2*j]} op_sel_hi:[1,0,1]")
        for j in range(4): a(f"v_pk_mul_f32 {e[2*j:2*j+2]}, {A[2*j:2*j+2]}, {nl} op_sel_hi:[1,0]")
        for j in range(8): a(f"v_exp_f32 {e[j]}, {e[j]}")
        for j in range(4): a(f"v_pk_mul_f32 {A[2*j:2*j+2]}, {A[2*j:2*j+2]}, {A[8+2*j:10+2*j]}")
        for j in range(4): a(f"v_pk_add_f32 {e[2*j:2*j+2]}, {e[2*j:2*j+2]}, {onep} op_sel_hi:[1,0]")
        for j in range(8): a(f"v_rcp_f32 {e[j]}, {e[j]}")
        for j in range(4): a(f"v_pk_mul_f32 {A[2*j:2*j+2]}, {A[2*j:2*j+2]}, {e[2*j:2*j+2]}")
        for j in range(4): a(f"v_cvt_pk_bf16_f32 {A[8+j]}, {A[2*j]}, {A[2*j+1]}")
        a(f"buffer_store_dwordx4 {A[8:12]}, {vo}, {ro}, {st} offen offset:{c*512}")
    T(); a("s_waitcnt vmcnt(0)" if DIAG else ""); T.flush()
    a("Lk3_end:\ns_endpgm")
    return dict(name='k3_kernel', lines=finish(a), vgpr=V.hi, agpr=0, grid=256, block=256, lds=L_U + 2048)

def gen_k0():
    a = Asm()
    load_args(a)
    roles = [('wq', 160, role_wq), ('xn', 128, role_xn), ('mod', 240, role_mod), ('wn', 148, role_wn)]
    hi = 0
    a("s_mov_b32 s3, s2")
    for n, cnt, f in roles:
        a(f"s_cmp_lt_u32 s3, {cnt}\ns_cbranch_scc1 Lk0_{n}\ns_sub_u32 s3, s3, {cnt}")
    a("s_endpgm")
    out = list(a.lines)
    for n, cnt, f in roles:
        b = Asm(); b.label(f"Lk0_{n}")
        hi = max(hi, f(b, Reg('s', 3)))
        out += auto_wait(b.lines)
    out, _ = fix_hazards(out)
    return dict(name='k0_kernel', lines=out, vgpr=hi, agpr=0, grid=sum(r[1] for r in roles), block=256, lds=20480)

def build(kernels, path):
    hdr = open('adaLN_cond__sliding_block__swiglu_ffn__prompt.s.ref').read().split('\n')
    hdr = [l for l in hdr if l.startswith(';') and '@launch' not in l and 'Override launch' not in l and 'grid=ceil' not in l]
    s = '\n'.join(hdr) + '\n'
    for k in kernels: s += f"; @launch kernel={k['name']} grid=({k['grid']},1,1) block=({k['block']},1,1) lds={k['lds']}\n"
    s += '.amdgcn_target "amdgcn-amd-amdhsa--gfx950"\n.text\n'
    seen = set()
    for k in kernels:
        if k['name'] in seen: continue
        seen.add(k['name']); s += kernel_text(k['name'], k['lines'])
    s += '.section .rodata,"a"\n'
    seen = set()
    for k in kernels:
        if k['name'] in seen: continue
        seen.add(k['name']); s += kd_text(k['name'], k['vgpr'], k['agpr'])
    open(path, 'w').write(s)

if __name__ == '__main__':
    if '--diag' in sys.argv: DIAG = 1
    if '--cyc' in sys.argv: DIAG = 2
    if '--hd' in sys.argv: DIAG = 3
    build([gen_k0(), gen_k1(), gen_narrow('k2', 20, 'wo'), gen_k3(), gen_narrow('k4', 54, 'wd')], sys.argv[1] if len(sys.argv) > 1 else 'k.s')
```

```python
import sys
sys.path.insert(0, 'tools')
from asmgen import *
from layout import *

LOG2E = 0x3fb8aa3b
ONES_BF = 0x3f803f80
def f2u(x):
    import struct
    return struct.unpack('<I', struct.pack('<f', x))[0]

P = dict(x=16, wqkv=18, wo=20, wg=24, wu=26, wd=28, c=30, wmod=32, out=34, dbg=36, ws=38)
def load_args(a):
    a("s_load_dwordx16 s[16:31], s[0:1], 0")
    a("s_load_dwordx8 s[32:39], s[0:1], 64")
def srd(a, d, ptr, off, size):
    p = P[ptr]
    if off:
        a(f"s_add_u32 {d[0]}, s{p}, {off:#x}")
        a(f"s_addc_u32 {d[1]}, s{p+1}, 0")
    else:
        a(f"s_mov_b32 {d[0]}, s{p}")
        a(f"s_mov_b32 {d[1]}, s{p+1}")
    a(f"s_mov_b32 {d[2]}, {size:#x}")
    a(f"s_mov_b32 {d[3]}, 0x20000")

DIAG = False
WS_TS = 0x3000000
class Stamps:
    cnt = 0
    def __init__(self, a, kidx):
        self.a, self.k, self.n = a, kidx, 0; Stamps.cnt += 1; self.uid = Stamps.cnt
    def __call__(self):
        if not DIAG: return
        assert self.n < 8
        self.a(f"{'s_memtime' if DIAG == 2 else 's_memrealtime'} s[{4+0}:{5}]\ns_waitcnt lgkmcnt(0)\ns_mov_b32 s{6+self.n}, s4"); self.n += 1
    def flush(self):
        if not DIAG: return
        self()
        a = self.a
        a("s_mov_b64 exec, -1")
        if DIAG == 3:
            a(f"s_add_u32 s40, s36, {512*(4-self.k)}\ns_addc_u32 s41, s37, 0\ns_mov_b32 s42, 256\ns_mov_b32 s43, 0x20000")
            a(f"s_not_b32 s4, s6\nv_mov_b32 v1, 0\nv_mov_b32 v2, s4\nv_mov_b32 v3, s{6+self.n-1}\ns_mov_b64 exec, 1")
            a(f"v_cmp_gt_u32 vcc, 64, v0\ns_and_b64 exec, exec, vcc\ns_cbranch_execz Lst{self.uid}\ns_mul_i32 s4, s2, 0x9e3779b1\ns_cmp_lt_u32 s4, 0x10000000\ns_cbranch_scc0 Lst{self.uid}")
            a(f"buffer_atomic_umax v2, v1, s[40:43], 0 offen offset:{8*self.k}\nbuffer_atomic_umax v3, v1, s[40:43], 0 offen offset:{8*self.k+4}\nLst{self.uid}:")
            return
        a(f"s_add_u32 s40, s38, {WS_TS + self.k*1024*8*32:#x}\ns_addc_u32 s41, s39, 0\ns_mov_b32 s42, {1024*8*32}\ns_mov_b32 s43, 0x20000")
        a("v_lshrrev_b32 v1, 6, v0\nv_lshlrev_b32 v1, 5, v1\ns_lshl_b32 s4, s2, 8")
        for i in range(self.n): a(f"v_mov_b32 v2, s{6+i}\nbuffer_store_dword v2, v1, s[40:43], s4 offen offset:{4*i}")

def nib(vals):
    r = 0
    for i, v in enumerate(vals): r |= v << (4*i)
    return r

def role_mod(a, sid):
    T = Stamps(a, 0); T()
    S = Alloc('s', 40, 100); V = Alloc('v', 1, 128)
    rw, rc, rp = S(4), S(4), S(4)
    ks, cg, t0, t1 = S(), S(), S(), S()
    a(f"s_mul_hi_u32 {ks}, {sid}, {(2**32+59)//60:#x}")
    a(f"s_mul_i32 {t0}, {ks}, 60")
    a(f"s_sub_u32 {cg}, {sid}, {t0}")
    vrow, voff, vc = V(), V(), V()
    a(f"s_mul_i32 {t0}, {ks}, 160")
    a(f"v_lshrrev_b32 {vrow}, 3, v0")
    a(f"v_add_u32 {vrow}, {t0}, {vrow}")
    a(f"v_mul_u32_u24 {voff}, 7680, {vrow}")
    a(f"v_and_b32 {vc}, 7, v0")
    a(f"v_lshl_add_u32 {voff}, {vc}, 4, {voff}")
    a(f"s_lshl_b32 {t1}, {cg}, 7")
    a(f"v_add_u32 {voff}, {t1}, {voff}")
    a(f"v_lshlrev_b32 {vrow}, 1, {vrow}")
    a("s_waitcnt lgkmcnt(0)")
    srd(a, rw, 'wmod', 0, 640*3840*2); srd(a, rc, 'c', 0, 1280)
    w = [V(4) for _ in range(5)]; c = [V() for _ in range(5)]
    for i in range(5): a(f"buffer_load_ushort {c[i]}, {vrow}, {rc}, 0 offen offset:{64*i}")
    for i in range(5):
        a(f"s_mov_b32 {t0}, {32*7680*i}")
        a(f"buffer_load_dwordx4 {w[i]}, {voff}, {rw}, {t0} offen")
    srd(a, rp, 'ws', WS_MODP, SZ_MODP)
    ylo = [V() for _ in range(5)]; yhi = [V() for _ in range(5)]
    a(f"s_mov_b32 {t1}, {LOG2E | 0x80000000:#x}")
    for i in range(5): a(f"v_lshlrev_b32 {c[i]}, 16, {c[i]}")
    for i in range(5): a(f"v_mul_f32 {ylo[i]}, {t1}, {c[i]}")
    for i in range(5): a(f"v_exp_f32 {ylo[i]}, {ylo[i]}")
    for i in range(5): a(f"v_add_f32 {ylo[i]}, 1.0, {ylo[i]}")
    for i in range(5): a(f"v_rcp_f32 {ylo[i]}, {ylo[i]}")
    for i in range(5): a(f"v_mul_f32 {ylo[i]}, {c[i]}, {ylo[i]}")
    for i in range(5): a(f"v_cvt_pk_bf16_f32 {ylo[i]}, {ylo[i]}, 0")
    for i in range(5): a(f"v_lshlrev_b32 {yhi[i]}, 16, {ylo[i]}")
    acc = V(8)
    for i in range(5):
        for j in range(8):
            y = (ylo, yhi)[j & 1][i]
            a(f"v_dot2_f32_bf16 {acc[j]}, {w[i][j>>1]}, {y}, {acc[j] if i else 0}")
    for j in range(4): a(f"v_permlane32_swap_b32 {acc[j]}, {acc[j+4]}")
    for j in range(4): a(f"v_add_f32 {acc[j]}, {acc[j]}, {acc[j+4]}")
    for j in range(2): a(f"v_permlane16_swap_b32 {acc[j]}, {acc[j+2]}")
    for j in range(2): a(f"v_add_f32 {acc[j]}, {acc[j]}, {acc[j+2]}")
    for j in range(2): a(f"v_add_f32 {acc[j]}, {acc[j]}, {acc[j]} row_ror:8 row_mask:0xf bank_mask:0xf")
    t = V(); u = V()
    a(f"v_lshlrev_b32 {t}, 5, {vc}")
    a(f"v_bfe_u32 {u}, v0, 4, 2")
    a(f"v_lshl_add_u32 {t}, {u}, 3, {t}")
    a(f"v_lshrrev_b32 {u}, 6, v0")
    a(f"v_lshl_add_u32 {t}, {u}, 8, {t}")
    a(f"ds_write_b64 {t}, {acc[0:2]}")
    a("s_waitcnt lgkmcnt(0)\ns_barrier")
    a(f"v_and_b32 {t}, 63, v0\nv_lshlrev_b32 {t}, 2, {t}")
    for i in range(4): a(f"ds_read_b32 {acc[i]}, {t} offset:{256*i}")
    a(f"s_mul_i32 {t0}, {ks}, {3840*4}")
    a(f"s_lshl_b32 {t1}, {cg}, 8")
    a(f"s_add_u32 {t0}, {t0}, {t1}")
    a(f"v_add_f32 {acc[0]}, {acc[0]}, {acc[1]}\nv_add_f32 {acc[2]}, {acc[2]}, {acc[3]}\nv_add_f32 {acc[0]}, {acc[0]}, {acc[2]}")
    a(f"buffer_store_dword {acc[0]}, {t}, {rp}, {t0} offen")
    a("s_waitcnt vmcnt(0)" if DIAG else ""); T.flush()
    a("s_endpgm")
    return V.hi

def role_xn(a, sid):
    T = Stamps(a, 0); T()
    S = Alloc('s', 40, 100); V = Alloc('v', 1, 128)
    rx, rf, rfl = S(4), S(4), S(4)
    t0, t1 = S(), S()
    vrow, vc, voff, vo2 = V(), V(), V(), V()
    a(f"v_lshrrev_b32 {vrow}, 6, v0\nv_and_b32 {vc}, 3, v0\nv_lshl_add_u32 {vrow}, {vrow}, 2, {vc}")
    a(f"s_lshl_b32 {t0}, {sid}, 4\nv_add_u32 {vrow}, {t0}, {vrow}")
    a(f"v_bfe_u32 {vc}, v0, 2, 4")
    a(f"v_mul_u32_u24 {voff}, 1280, {vrow}\nv_lshl_add_u32 {voff}, {vc}, 4, {voff}")
    a("s_waitcnt lgkmcnt(0)")
    srd(a, rx, 'x', 0, SZ_ACT16)
    w = [V(4) for _ in range(5)]
    for i in range(5): a(f"buffer_load_dwordx4 {w[i]}, {voff}, {rx}, 0 offen offset:{256*i}")
    srd(a, rf, 'ws', WS_XF, SZ_ACT16); srd(a, rfl, 'ws', WS_FLAG, SZ_FLAG)
    z = V()
    a(f"v_mov_b32 {z}, 0\nv_and_b32 {vo2}, 63, v0\nv_lshlrev_b32 {vo2}, 2, {vo2}\ns_lshl_b32 {t1}, {sid}, 8")
    a(f"buffer_store_dword {z}, {vo2}, {rfl}, {t1} offen")
    a(f"v_lshrrev_b32 {vo2}, 5, {vrow}\nv_mul_u32_u24 {vo2}, 40960, {vo2}\nv_lshl_add_u32 {vo2}, {vc}, 9, {vo2}")
    a(f"v_and_b32 {vrow}, 31, {vrow}\nv_lshl_add_u32 {vo2}, {vrow}, 4, {vo2}")
    f = V(40); sm = V(2); tmp = V(2); one = V()
    a(f"v_mov_b32 {one}, {ONES_BF:#x}")
    def allreduce(x, t):
        a(f"v_add_f32 {x}, {x}, {x} row_ror:4 row_mask:0xf bank_mask:0xf")
        a(f"v_add_f32 {x}, {x}, {x} row_ror:8 row_mask:0xf bank_mask:0xf")
        a(f"v_mov_b32 {t}, {x}\nv_permlane16_swap_b32 {x}, {t}\nv_add_f32 {x}, {x}, {t}")
        a(f"v_mov_b32 {t}, {x}\nv_permlane32_swap_b32 {x}, {t}\nv_add_f32 {x}, {x}, {t}")
    for i in range(5):
        for j in range(4):
            a(f"v_dot2_f32_bf16 {sm[j&1]}, {w[i][j]}, {one}, {sm[j&1] if (i or j>1) else 0}")
            a(f"v_lshlrev_b32 {f[8*i+2*j]}, 16, {w[i][j]}")
            a(f"v_and_b32 {f[8*i+2*j+1]}, 0xffff0000, {w[i][j]}")
    a(f"v_add_f32 {sm[0]}, {sm[0]}, {sm[1]}")
    allreduce(sm[0], tmp[0])
    a(f"v_mul_f32 {sm[0]}, {f2u(-1.0/640):#x}, {sm[0]}")
    for j in range(20): a(f"v_pk_add_f32 {f[2*j:2*j+2]}, {f[2*j:2*j+2]}, {sm} op_sel_hi:[1,0]")
    for j in range(20):
        if j == 0: a(f"v_pk_mul_f32 {tmp}, {f[0:2]}, {f[0:2]}")
        else: a(f"v_pk_fma_f32 {tmp}, {f[2*j:2*j+2]}, {f[2*j:2*j+2]}, {tmp}")
    a(f"v_add_f32 {sm[0]}, {tmp[0]}, {tmp[1]}")
    allreduce(sm[0], tmp[0])
    a(f"v_mov_b32 {tmp[0]}, {f2u(1e-5):#x}")
    a(f"v_fmac_f32 {tmp[0]}, {f2u(1.0/640):#x}, {sm[0]}")
    a(f"v_rsq_f32 {sm[0]}, {tmp[0]}")
    for j in range(20): a(f"v_pk_mul_f32 {f[2*j:2*j+2]}, {f[2*j:2*j+2]}, {sm} op_sel_hi:[1,0]")
    for i in range(5):
        for j in range(4): a(f"v_cvt_pk_bf16_f32 {w[i][j]}, {f[8*i+2*j]}, {f[8*i+2*j+1]}")
        a(f"s_mov_b32 {t0}, {8192*i}")
        a(f"buffer_store_dwordx4 {w[i]}, {vo2}, {rf}, {t0} offen")
    a("s_waitcnt vmcnt(0)" if DIAG else ""); T.flush()
    a("s_endpgm")
    return V.hi

QUADS = None
def wq_quads(par):
    base, tail = (0, 4) if par == 0 else (1, 0)
    q = [(0, i) for i in range(5)] + [(2, tail)] + [(1, i) for i in range(5)] + [(1, 4)]
    q += [(2, base), (2, base+2), (2, base+1), (2, base+3)]
    return q
def role_wq(a, sid):
    T = Stamps(a, 0); T()
    S = Alloc('s', 40, 100); V = Alloc('v', 1, 128)
    rw, rf = S(4), S(4)
    ks, hg, wv, t0, t1 = S(), S(), S(), S(), S()
    lane, t, u = V(), V(), V()
    a(f"s_lshr_b32 {ks}, {sid}, 2\ns_and_b32 {hg}, {sid}, 3")
    a(f"v_lshrrev_b32 {t}, 6, v0\nv_and_b32 {lane}, 63, v0\nv_readfirstlane_b32 {wv}, {t}")
    off = [V() for _ in range(5)]
    for i in range(5):
        a(f"v_add_u32 {t}, {64*i}, {lane}")
        a(f"v_mul_u32_u24 {u}, 3277, {t}\nv_lshrrev_b32 {u}, 16, {u}")
        a(f"v_mul_u32_u24 {off[i]}, {3840-320}, {u}\nv_lshl_add_u32 {off[i]}, {t}, 4, {off[i]}")
    a(f"s_mul_i32 {t0}, {ks}, {16*3840}\ns_mul_i32 {t1}, {wv}, 1280\ns_add_u32 {t0}, {t0}, {t1}\ns_mul_i32 {t1}, {hg}, 320\ns_add_u32 {t0}, {t0}, {t1}")
    a("s_waitcnt lgkmcnt(0)")
    srd(a, rw, 'wqkv', 0, 640*1920*2); srd(a, rf, 'ws', WS_WQF, SZ_WQF)
    a(f"s_cmp_eq_u32 {wv}, 3\ns_cbranch_scc1 Lwq_noload")
    a(f"s_mul_i32 {t1}, {wv}, 5120")
    for i in range(5):
        a(f"s_add_u32 m0, {t1}, {1024*i}")
        a(f"buffer_load_dwordx4 {off[i]}, {rw}, {t0} offen lds")
    a("Lwq_noload:")
    q, kr = V(), V()
    a(f"v_bfe_u32 {q}, {lane}, 4, 1\nv_and_b32 {t}, 3, {lane}\nv_lshl_add_u32 {q}, {q}, 2, {t}\nv_lshlrev_b32 {q}, 2, {q}")
    a(f"v_lshrrev_b32 {kr}, 5, {lane}\nv_bfe_u32 {t}, {lane}, 2, 2\nv_lshl_add_u32 {kr}, {kr}, 3, {t}\nv_mul_u32_u24 {kr}, 320, {kr}")
    a(f"s_mul_i32 {t1}, {wv}, 80\nv_add_u32 {kr}, {t1}, {kr}")
    ad = {}
    for par in range(2):
        Q = wq_quads(par)
        for tl in range(2):
            r = V(); ad[par, tl] = r
            a(f"s_mov_b32 {t1}, {nib([x[0] for x in Q[8*tl:8*tl+8]]):#x}\nv_bfe_u32 {t}, {t1}, {q}, 4")
            a(f"s_mov_b32 {t1}, {nib([x[1] for x in Q[8*tl:8*tl+8]]):#x}\nv_bfe_u32 {u}, {t1}, {q}, 4")
            a(f"v_mul_u32_u24 {t}, 5120, {t}\nv_lshl_add_u32 {t}, {u}, 3, {t}\nv_add_u32 {r}, {t}, {kr}")
    vo = V()
    a(f"v_lshlrev_b32 {vo}, 4, {lane}")
    a(f"s_lshl_b32 {t0}, {hg}, 2\ns_add_u32 {t0}, {t0}, {wv}\ns_mul_i32 {t0}, {t0}, {2*81920}\ns_lshl_b32 {t1}, {ks}, 11\ns_add_u32 {t0}, {t0}, {t1}")
    a(f"s_add_u32 {t1}, {t0}, 81920")
    a("s_waitcnt vmcnt(0)\ns_barrier")
    fr = {}
    for par in range(2):
        for tl in range(2):
            f = V(4); fr[par, tl] = f
            for uu in range(2): a(f"ds_read_b64_tr_b16 {f[2*uu:2*uu+2]}, {ad[par,tl]} offset:{par*40 + uu*1280}")
    for par in range(2):
        for tl in range(2):
            a(f"buffer_store_dwordx4 {fr[par,tl]}, {vo}, {rf}, {(t0,t1)[par]} offen offset:{1024*tl}")
    a("s_waitcnt vmcnt(0)" if DIAG else ""); T.flush()
    a("s_endpgm")
    return V.hi

def role_wn(a, sid):
    T = Stamps(a, 0); T()
    S = Alloc('s', 40, 100); V = Alloc('v', 1, 128)
    rw, rf = S(4), S(4)
    ks, hf, wv, t0, t1, nk = S(), S(), S(), S(), S(), S()
    lane, t, u = V(), V(), V()
    a(f"s_lshr_b32 {ks}, {sid}, 1\ns_and_b32 {hf}, {sid}, 1")
    a(f"v_lshrrev_b32 {t}, 6, v0\nv_and_b32 {lane}, 63, v0\nv_readfirstlane_b32 {wv}, {t}")
    off = [V() for _ in range(5)]
    for i in range(5):
        a(f"v_add_u32 {t}, {64*i}, {lane}")
        a(f"v_mul_u32_u24 {u}, 1639, {t}\nv_lshrrev_b32 {u}, 16, {u}")
        a(f"v_mul_u32_u24 {off[i]}, {1280-640}, {u}\nv_lshl_add_u32 {off[i]}, {t}, 4, {off[i]}")
    a("s_waitcnt lgkmcnt(0)")
    a(f"s_cmp_lt_u32 {ks}, 20\ns_cbranch_scc0 Lwn_wd")
    srd(a, rw, 'wo', 0, SZ_WOF); srd(a, rf, 'ws', WS_WOF, SZ_WOF); a(f"s_mov_b32 {nk}, 20\ns_branch Lwn_go")
    a("Lwn_wd:")
    srd(a, rw, 'wd', 0, SZ_WDF); srd(a, rf, 'ws', WS_WDF, SZ_WDF); a(f"s_mov_b32 {nk}, 54\ns_sub_u32 {ks}, {ks}, 20")
    a("Lwn_go:")
    a(f"s_lshl_b32 {t0}, {ks}, 2\ns_add_u32 {t0}, {t0}, {wv}\ns_mul_i32 {t0}, {t0}, {8*1280}\ns_mul_i32 {t1}, {hf}, 640\ns_add_u32 {t0}, {t0}, {t1}")
    a(f"s_mul_i32 {t1}, {wv}, 5120")
    for i in range(5):
        a(f"s_add_u32 m0, {t1}, {1024*i}")
        a(f"buffer_load_dwordx4 {off[i]}, {rw}, {t0} offen lds")
    a0, a1, kr = V(), V(), V()
    a(f"v_lshrrev_b32 {kr}, 4, {lane}\nv_bfe_u32 {t}, {lane}, 2, 2\nv_lshl_add_u32 {kr}, {kr}, 3, {t}\nv_mul_u32_u24 {kr}, 640, {kr}")
    a(f"s_mul_i32 {t1}, {wv}, 160\nv_add_u32 {kr}, {t1}, {kr}\nv_and_b32 {t}, 3, {lane}")
    a(f"v_lshl_add_u32 {a0}, {t}, 4, {kr}\nv_lshl_add_u32 {a1}, {t}, 3, {kr}")
    vo = V()
    a(f"v_lshlrev_b32 {vo}, 4, {lane}")
    a(f"s_lshl_b32 {t0}, {hf}, 2\ns_add_u32 {t0}, {t0}, {wv}\ns_mul_i32 {t0}, {t0}, {nk}\ns_add_u32 {t0}, {t0}, {ks}\ns_mul_i32 {t0}, {t0}, 5120")
    a(f"s_add_u32 {t1}, {t0}, 4096")
    a("s_waitcnt vmcnt(0)\ns_barrier")
    fr = [V(4) for _ in range(5)]
    for tl in range(5):
        for uu in range(2):
            o = (64*(tl >> 1) + 8*(tl & 1) if tl < 4 else 128) + uu*4*640
            a(f"ds_read_b64_tr_b16 {fr[tl][2*uu:2*uu+2]}, {a0 if tl<4 else a1} offset:{o}")
    for tl in range(5):
        a(f"buffer_store_dwordx4 {fr[tl]}, {vo}, {rf}, {t0 if tl<4 else t1} offen offset:{1024*(tl&3)}")
    a("s_waitcnt vmcnt(0)" if DIAG else ""); T.flush()
    a("s_endpgm")
    return V.hi


def modvec_load(a, V, rmp, voff, st, col_scale, col_shift):
    r = [[V(2) for _ in range(4)] for _ in range(2)]
    for vi, col in enumerate((col_scale, col_shift)):
        for p in range(4):
            a(f"s_mov_b32 {st}, {p*15360 + col*4}")
            a(f"buffer_load_dwordx2 {r[vi][p]}, {voff}, {rmp}, {st} offen")
    return r
def modvec_finish(a, r, vaddr, ldsoff):
    for vi in range(2):
        x = r[vi]
        a(f"v_pk_add_f32 {x[0]}, {x[0]}, {x[1]}\nv_pk_add_f32 {x[2]}, {x[2]}, {x[3]}\nv_pk_add_f32 {x[0]}, {x[0]}, {x[2]}")
        a(f"v_cvt_pk_bf16_f32 {x[0][0]}, {x[0][0]}, {x[0][1]}")
        if vi == 0:
            a(f"v_and_b32 {x[0][1]}, 0xffff0000, {x[0][0]}\nv_lshlrev_b32 {x[0][0]}, 16, {x[0][0]}")
            a(f"v_add_f32 {x[0][0]}, 1.0, {x[0][0]}\nv_add_f32 {x[0][1]}, 1.0, {x[0][1]}")
            a(f"v_cvt_pk_bf16_f32 {x[0][0]}, {x[0][0]}, {x[0][1]}")
        a(f"ds_write_b32 {vaddr}, {x[0][0]} offset:{ldsoff + 256*vi}")
def scale_ops(frags, baccs, first, sp, sap, msk, tmp, csum=None, one=None):
    o = []
    for i in range(4):
        o.append(f"v_and_b32 {msk[2*i]}, 0xffff, {sp[i]}")
        o.append(f"v_and_b32 {msk[2*i+1]}, 0xffff0000, {sp[i]}")
    for fi, f in enumerate(frags):
        for i in range(4):
            o.append(f"v_dot2_f32_bf16 {tmp[2*i]}, {f[i]}, {msk[2*i]}, 0")
            o.append(f"v_dot2_f32_bf16 {tmp[2*i+1]}, {f[i]}, {msk[2*i+1]}, 0")
        for i in range(4):
            o.append(f"v_dot2_f32_bf16 {baccs[fi]}, {f[i]}, {sap[i]}, {0 if (first and i == 0) else baccs[fi]}")
        for i in range(4):
            o.append(f"v_cvt_pk_bf16_f32 {f[i]}, {tmp[2*i]}, {tmp[2*i+1]}")
        if csum is not None:
            for i in range(4):
                o.append(f"v_dot2_f32_bf16 {csum[fi]}, {f[i]}, {one}, {0 if (first and i == 0) else csum[fi]}")
    return o

NEG = f2u(-1e30)
QSCALE = f2u(20**-0.5 * 1.4426950408889634)
L_WP, L_KV, L_MV, L_BP, L_BF, L_K1END = 0, 81920, 131072, 135168, 137216, 139264
def gen_k1():
    a = Asm()
    S = Alloc('s', 40, 100); V = Alloc('v', 1, 256)
    load_args(a)
    a("s_cmp_ge_u32 s2, 256\ns_cbranch_scc1 Lk1_end")
    T = Stamps(a, 1); T()
    rmp, rwq, rxf, rkv, rfl, rof, rmod = S(4), S(4), S(4), S(4), S(4), S(4), S(4)
    blk, head, wv, st, st2, sxo, swo, hm = S(), S(), S(), S(), S(), S(), S(), S(2)
    lane, l16, t, u, vmv, vmr = V(), V(), V(), V(), V(), V()
    a(f"s_bfe_u32 {blk}, s2, 0x20001\ns_lshl_b32 {blk}, {blk}, 1\ns_lshr_b32 {st}, s2, 7\ns_add_u32 {blk}, {blk}, {st}")
    a(f"s_and_b32 {head}, s2, 1\ns_lshl_b32 {head}, {head}, 4\ns_bfe_u32 {st}, s2, 0x40003\ns_add_u32 {head}, {head}, {st}")
    a(f"v_lshrrev_b32 {t}, 6, v0\nv_and_b32 {lane}, 63, v0\nv_readfirstlane_b32 {wv}, {t}")
    a(f"v_lshlrev_b32 {l16}, 4, {lane}")
    vmo = V()
    a(f"v_lshrrev_b32 {u}, 3, {lane}\nv_lshlrev_b32 {vmo}, 9, {u}\nv_and_b32 {u}, 7, {lane}\nv_lshl_add_u32 {vmo}, {u}, 3, {vmo}\nv_lshl_add_u32 {vmo}, {t}, 6, {vmo}")
    a(f"v_lshlrev_b32 {vmv}, 9, {t}\nv_lshrrev_b32 {u}, 5, {lane}\nv_lshl_add_u32 {vmr}, {u}, 4, {vmv}\nv_lshl_add_u32 {vmv}, {lane}, 2, {vmv}")
    a(f"v_add_u32 {vmr}, {L_MV}, {vmr}\nv_add_u32 {vmv}, {L_MV}, {vmv}")
    a(f"s_mov_b32 {hm[0]}, 0\ns_mov_b32 {hm[1]}, -1")
    a(f"s_lshl_b32 {sxo}, {blk}, 3\ns_add_u32 {sxo}, {sxo}, {wv}\ns_mul_i32 {sxo}, {sxo}, 40960")
    a(f"s_mul_i32 {swo}, {head}, 81920\ns_lshl_b32 {st}, {wv}, 11\ns_add_u32 {swo}, {swo}, {st}")
    a("s_waitcnt lgkmcnt(0)")
    srd(a, rmp, 'ws', WS_MODP, SZ_MODP); srd(a, rwq, 'ws', WS_WQF, SZ_WQF); srd(a, rxf, 'ws', WS_XF, SZ_ACT16)
    X = [V(32) for _ in range(3)]
    raw = [V(8) for _ in range(2)]
    acc = V(32); wp = [V(8) for _ in range(2)]
    sp, sap, msk, tmp, bacc = V(4), V(4), V(8), V(8), V(2)
    mp = modvec_load(a, V, rmp, vmo, st, 640, 0)
    def ld_w(r):
        return [[f"s_add_u32 {st2}, {swo}, {r*16384}", f"buffer_load_dwordx4 {raw[r&1][0:4]}, {l16}, {rwq}, {st2} offen"],
                [f"buffer_load_dwordx4 {raw[r&1][4:8]}, {l16}, {rwq}, {st2} offen offset:1024"]]
    def ld_x(r):
        o = []
        for s_ in range(8):
            g = []
            if s_ % 4 == 0: g.append(f"s_add_u32 {st2}, {sxo}, {(8*r+s_)*1024}")
            g.append(f"buffer_load_dwordx4 {X[r%3][4*s_:4*s_+4]}, {l16}, {rxf}, {st2} offen offset:{(s_%4)*1024}")
            o.append(g)
        return o
    for g in ld_w(0) + ld_x(0) + ld_w(1): a('\n'.join(g))
    srd(a, rkv, 'ws', WS_KV, SZ_KV); srd(a, rfl, 'ws', WS_FLAG, SZ_FLAG); srd(a, rof, 'ws', WS_OF, SZ_ACT16); srd(a, rmod, 'ws', WS_MOD, SZ_MOD)
    modvec_finish(a, mp, vmv, 0)
    for x in mp: V.release(*x)
    V.release(vmo)
    vww = V()
    a(f"v_lshl_add_u32 {vww}, {t}, 11, {l16}")
    vw2 = V()
    a(f"v_add_u32 {vw2}, 65536, {l16}")
    def scale_round(r):
        o = [f"ds_read_b128 {sp}, {vmr} offset:{32*r}", f"ds_read_b128 {sap}, {vmr} offset:{256 + 32*r}"]
        o += scale_ops([raw[r&1][0:4], raw[r&1][4:8]], [bacc[0], bacc[1]], r == 0, sp, sap, msk, tmp)
        if r < 4:
            o += [f"ds_write_b128 {vww}, {raw[r&1][0:4]} offset:{r*16384}", f"ds_write_b128 {vww}, {raw[r&1][4:8]} offset:{r*16384+1024}"]
        else:
            o += [f"v_add_u32 {vww}, 65536, {vww}", f"ds_write_b128 {vww}, {raw[r&1][0:4]}", f"ds_write_b128 {vww}, {raw[r&1][4:8]} offset:1024"]
        return o
    for l in interleave([[x] for x in scale_round(0)], ld_x(1)): a(l)
    def rd_w(ks):
        base, off = (l16, ks*2048) if ks < 32 else (vw2, (ks-32)*2048)
        return [f"ds_read_b128 {wp[ks&1][0:4]}, {base} offset:{off}", f"ds_read_b128 {wp[ks&1][4:8]}, {base} offset:{off+1024}"]
    bias = X[0]
    vbp, vbf = V(), V()
    for r in range(5):
        a("s_waitcnt lgkmcnt(0)\ns_barrier")
        if r in (0, 2): T()
        a('\n'.join(rd_w(8*r)))
        main = []
        for s_ in range(8):
            ks = 8*r + s_
            g = rd_w(ks+1) if s_ < 7 else []
            for tl in range(2):
                c = acc[16*tl:16*tl+16]
                m = f"v_mfma_f32_32x32x16_bf16 {c}, {wp[ks&1][4*tl:4*tl+4]}, {X[r%3][4*s_:4*s_+4]}, {c if ks else 0}"
                main.append(g + [m] if tl == 0 else [m])
        fill = []
        if r < 3:
            fill = interleave([[x] for x in scale_round(r+1)], ld_x(r+2)[:0])
            lds_ = ld_w(r+2) + ld_x(r+2)
            fill = [[x] for x in fill]
            fill = interleave_items(fill, lds_)
        elif r == 3:
            fill = [[x] for x in scale_round(4)]
            fill += [[f"v_permlane32_swap_b32 {bacc[0]}, {bacc[1]}"], [f"v_add_f32 {bacc[0]}, {bacc[0]}, {bacc[1]}"],
                     [f"v_lshlrev_b32 {vbp}, 2, v0"], [f"v_add_u32 {vbp}, {L_BP}, {vbp}"], [f"ds_write_b32 {vbp}, {bacc[0]}"]]
        else:
            fill = [[f"v_lshlrev_b32 {vbf}, 2, {lane}"], [f"v_add_u32 {vbf}, {L_BP}, {vbf}"]]
            fill += [[f"ds_read_b32 {tmp[i]}, {vbf} offset:{256*i}"] for i in range(8)]
            fill += [[f"v_add_f32 {tmp[i]}, {tmp[i]}, {tmp[i+4]}"] for i in range(4)]
            fill += [[f"v_add_f32 {tmp[i]}, {tmp[i]}, {tmp[i+2]}"] for i in range(2)]
            fill += [[f"v_add_f32 {tmp[0]}, {tmp[0]}, {tmp[1]}"], [f"ds_write_b32 {vbp}, {tmp[0]} offset:{L_BF-L_BP}"]]
            fill += [[f"v_lshrrev_b32 {vbf}, 5, {lane}"], [f"v_lshlrev_b32 {vbf}, 4, {vbf}"], [f"v_lshl_add_u32 {vbf}, {t}, 8, {vbf}"], [f"v_add_u32 {vbf}, {L_BF}, {vbf}"]]
            fill += [[f"ds_read_b128 {bias[4*G:4*G+4]}, {vbf} offset:{32*G}"] for G in range(8)]
        for l in interleave(main, fill): a(l)
    T()
    V.release(*wp, *raw, sp, sap, msk, tmp, bacc, vww, vw2, vbp, vbf, vmv, vmr, X[1], X[2])
    Pk = V(16); Q1 = V(2); K1 = V(2); Vt = V(2); cq = V(2); cq2 = V(2); c1 = V()
    vk0, vk1, vv0, vv1 = V(), V(), V(), V()
    a(f"s_mul_i32 {st}, {wv}, 3072\ns_add_u32 {st}, {st}, {L_KV}")
    a(f"v_add_u32 {vk0}, {st}, {l16}")
    a(f"v_lshl_add_u32 {vk1}, {lane}, 3, {st}")
    a(f"v_and_b32 {u}, 31, {lane}\nv_mul_u32_u24 {vv0}, 48, {u}\nv_add_u32 {vv0}, {st}, {vv0}\nv_lshrrev_b32 {u}, 5, {lane}")
    a(f"v_lshlrev_b32 {vv1}, 3, {u}\nv_sub_u32 {vv1}, {vv0}, {vv1}\nv_lshl_add_u32 {vv0}, {u}, 4, {vv0}")
    a(f"v_mov_b32 {cq[0]}, {QSCALE:#x}\nv_cndmask_b32 {cq2[0]}, {cq[0]}, 1.0, {hm}\nv_mov_b32 {c1}, 0x3f80")
    for j in range(16): a(f"v_pk_add_f32 {acc[2*j:2*j+2]}, {acc[2*j:2*j+2]}, {bias[2*j:2*j+2]}")
    for j in range(6): a(f"v_pk_mul_f32 {acc[2*j:2*j+2]}, {acc[2*j:2*j+2]}, {cq if j<4 else cq2} op_sel_hi:[1,0]")
    for j in list(range(6, 16)) + list(range(6)): a(f"v_cvt_pk_bf16_f32 {Pk[j]}, {acc[2*j]}, {acc[2*j+1]}")
    OWN = 8*3072
    a(f"ds_write_b128 {vk0}, {Pk[6:10]} offset:{OWN}")
    a(f"ds_write_b128 {vv0}, {Pk[12:16]} offset:{OWN+1536}")
    a(f"v_cndmask_b32 {K1[0]}, {Pk[10]}, 0, {hm}\nv_cndmask_b32 {K1[1]}, {Pk[11]}, 0, {hm}")
    a(f"v_cndmask_b32 {Vt[0]}, {c1}, {Pk[4]}, {hm}\nv_cndmask_b32 {Vt[1]}, 0, {Pk[5]}, {hm}")
    a(f"ds_write_b64 {vk1}, {K1} offset:{OWN+1024}")
    a(f"ds_write_b64 {vv1}, {Vt} offset:{OWN+1536+40}")
    a(f"v_cndmask_b32 {Q1[0]}, {Pk[4]}, {c1}, {hm}\nv_cndmask_b32 {Q1[1]}, {Pk[5]}, 0, {hm}")
    Q0 = Pk[0:4]
    pub = bias[0:12]
    for i in range(3): a(f"ds_read_b128 {pub[4*i:4*i+4]}, {vk0} offset:{OWN+1024*i}")
    sid, skv, sfl = S(), S(), S()
    a(f"s_lshl_b32 {sid}, {blk}, 5\ns_add_u32 {sid}, {sid}, {head}")
    a(f"s_lshl_b32 {skv}, {sid}, 3\ns_add_u32 {skv}, {skv}, {wv}\ns_mul_i32 {skv}, {skv}, 3072")
    a(f"s_lshl_b32 {sfl}, {sid}, 7\ns_lshl_b32 {st2}, {wv}, 2\ns_add_u32 {sfl}, {sfl}, {st2}")
    for i in range(3): a(f"buffer_store_dwordx4 {pub[4*i:4*i+4]}, {l16}, {rkv}, {skv} offen offset:{1024*i} sc1")
    V.release(acc, K1, Vt, cq, cq2, vv0, vv1)
    Sx = [V(16) for _ in range(9)]
    cm = S(2); vneg = V()
    a(f"v_and_b32 {t}, 31, {lane}\nv_lshrrev_b32 {u}, 5, {lane}\nv_lshlrev_b32 {u}, 2, {u}\nv_sub_u32 {t}, {t}, {u}\nv_mov_b32 {vneg}, {NEG:#x}")
    for r in range(16):
        cr = (r & 3) + 8*(r >> 2)
        a(f"v_cmp_gt_i32 {cm}, {cr}, {t}")
        a(f"v_cndmask_b32 {Sx[0][r]}, {vneg}, 0, {cm}\nv_cndmask_b32 {Sx[8][r]}, 0, {vneg}, {cm}")
    z = V(); one = V()
    a(f"v_mov_b32 {z}, 0\nv_mov_b32 {one}, 1")
    a("s_waitcnt vmcnt(0)")
    a(f"buffer_store_dword {one}, {z}, {rfl}, {sfl} offen sc1")
    T()
    a("s_cmp_lt_u32 s2, 8\ns_cbranch_scc0 Lk1_nomod\n@save")
    a(f"s_lshl_b32 {st}, s2, 11\nv_lshl_add_u32 {u}, v0, 2, {st}")
    for p in range(4):
        a(f"s_mov_b32 {st}, {p*15360}\nbuffer_load_dword {pub[p]}, {u}, {rmp}, {st} offen")
    a(f"v_add_f32 {pub[0]}, {pub[0]}, {pub[1]}\nv_add_f32 {pub[2]}, {pub[2]}, {pub[3]}\nv_add_f32 {pub[0]}, {pub[0]}, {pub[2]}")
    a(f"v_cvt_pk_bf16_f32 {pub[0]}, 0, {pub[0]}")
    a(f"buffer_store_dword {pub[0]}, {u}, {rmod}, 0 offen\ns_waitcnt vmcnt(0)\n@restore")
    a("Lk1_nomod:")
    a(f"s_cmp_eq_u32 {blk}, 0\ns_cbranch_scc1 Lk1_first")
    a(f"s_sub_u32 {skv}, {skv}, {32*8*3072}\ns_sub_u32 {sfl}, {sfl}, {32*128}\ns_mov_b32 {st2}, 0")
    a("Lk1_poll:")
    a(f"buffer_load_dword {one}, {z}, {rfl}, {sfl} offen sc1\ns_waitcnt vmcnt(0)\nv_readfirstlane_b32 {st}, {one}")
    a(f"s_add_u32 {st2}, {st2}, 1\ns_cmp_gt_u32 {st2}, 0x40000\ns_cbranch_scc1 Lk1_got")
    a(f"s_cmp_eq_u32 {st}, 1\ns_cbranch_scc0 Lk1_poll")
    a("Lk1_got:")
    for i in range(3): a(f"buffer_load_dwordx4 {pub[4*i:4*i+4]}, {l16}, {rkv}, {skv} offen offset:{1024*i} sc1")
    a("s_waitcnt vmcnt(0)\ns_branch Lk1_wr")
    a("Lk1_first:")
    for i in range(12): a(f"v_mov_b32 {pub[i]}, 0")
    a(f"s_mov_b32 {cm[0]}, 0xffff0000\ns_mov_b32 {cm[1]}, 0\nv_mov_b32 {u}, {NEG>>16:#x}")
    a(f"v_cndmask_b32 {pub[4]}, 0, {u}, {cm}\nv_cndmask_b32 {pub[6]}, 0, {u}, {cm}")
    a("Lk1_wr:\n@reset")
    for i in range(3): a(f"ds_write_b128 {vk0}, {pub[4*i:4*i+4]} offset:{1024*i}")
    vtr = V()
    a(f"v_lshrrev_b32 {t}, 5, {lane}\nv_bfe_u32 {u}, {lane}, 2, 2\nv_lshl_add_u32 {t}, {t}, 2, {u}\nv_mul_u32_u24 {vtr}, 48, {t}")
    a(f"v_bfe_u32 {t}, {lane}, 4, 1\nv_and_b32 {u}, 3, {lane}\nv_lshl_add_u32 {t}, {t}, 2, {u}\nv_lshlrev_b32 {t}, 2, {t}")
    a(f"s_mov_b32 {st2}, {nib([0,2,1,3,4,5,5,5]):#x}\nv_bfe_u32 {t}, {st2}, {t}, 4\nv_lshl_add_u32 {vtr}, {t}, 3, {vtr}")
    a(f"s_mul_i32 {st}, {wv}, 3072\ns_add_u32 {st}, {st}, {L_KV+1536}\nv_add_u32 {vtr}, {st}, {vtr}")
    a("s_waitcnt lgkmcnt(0)\ns_barrier")
    T()
    kf = [bias[6*i:6*i+6] for i in range(4)]
    def rd_k(tl): return [f"ds_read_b128 {kf[tl%4][0:4]}, {vk0} offset:{tl*3072}", f"ds_read_b64 {kf[tl%4][4:6]}, {vk1} offset:{tl*3072+1024}"]
    mx = V(2)
    def max_ops(tl):
        o = []
        for j in range(8):
            m = mx[j & 1]
            if tl == 0 and j < 2: o.append(f"v_max_f32 {m}, {Sx[tl][2*j]}, {Sx[tl][2*j+1]}")
            else: o.append(f"v_max3_f32 {m}, {Sx[tl][2*j]}, {Sx[tl][2*j+1]}, {m}")
        return o
    a('\n'.join(rd_k(0) + rd_k(1) + rd_k(2)))
    for tl in range(9):
        if tl + 3 < 9: a('\n'.join(rd_k(tl+3)))
        c = Sx[tl] if tl in (0, 8) else 0
        mo = max_ops(tl-2) if tl >= 2 else []
        a(f"v_mfma_f32_32x32x16_bf16 {Sx[tl]}, {kf[tl%4][0:4]}, {Q0}, {c}")
        a('\n'.join(mo[:4]))
        a(f"v_mfma_f32_32x32x8bf16_1k {Sx[tl]}, {kf[tl%4][4:6]}, {Q1}, {Sx[tl]}")
        a('\n'.join(mo[4:]))
    vf = [bias[8*i:8*i+8] for i in range(3)]
    def rd_v(tl): return [f"ds_read_b64_tr_b16 {vf[tl%3][2*q:2*q+2]}, {vtr} offset:{tl*3072 + q*8*48}" for q in range(4)]
    a('\n'.join(max_ops(7)))
    a('\n'.join(rd_v(0) + rd_v(1)))
    a('\n'.join(max_ops(8)))
    a(f"v_max_f32 {mx[0]}, {mx[0]}, {mx[1]}\nv_mov_b32 {mx[1]}, {mx[0]}\nv_permlane32_swap_b32 {mx[0]}, {mx[1]}\nv_max_f32 {mx[0]}, {mx[0]}, {mx[1]}")
    O = V(16)
    def pv(tl): return [f"v_mfma_f32_32x32x16_bf16 {O}, {vf[tl%3][4*s_:4*s_+4]}, {Sx[tl][4*s_:4*s_+4]}, {O if (tl or s_) else 0}" for s_ in range(2)]
    for tl in range(9):
        s_ = Sx[tl]
        ops = [f"v_pk_add_f32 {s_[2*j:2*j+2]}, {s_[2*j:2*j+2]}, {mx} op_sel_hi:[1,0] neg_lo:[0,1] neg_hi:[0,1]" for j in range(8)]
        ops += [f"v_exp_f32 {s_[j]}, {s_[j]}" for j in range(16)]
        ops += [f"v_cvt_pk_bf16_f32 {s_[j]}, {s_[2*j]}, {s_[2*j+1]}" for j in range(8)]
        if tl >= 1:
            p = pv(tl-1); ops.insert(4, p[0]); ops.insert(14, p[1])
            if tl + 1 < 9: ops[18:18] = rd_v(tl+1)
        a('\n'.join(ops))
    a('\n'.join(pv(8)))
    vo = V()
    a(f"v_bfe_u32 {t}, {lane}, 4, 1\nv_mul_u32_u24 {vo}, 20480, {t}\nv_and_b32 {u}, 15, {lane}\nv_lshl_add_u32 {vo}, {u}, 4, {vo}")
    a(f"v_lshrrev_b32 {u}, 5, {lane}\nv_lshl_add_u32 {t}, {u}, 8, {vo}")
    a(f"s_lshr_b32 {st}, {head}, 1\ns_mul_i32 {st}, {st}, 1280\ns_add_u32 {st}, {st}, {sxo}\ns_and_b32 {sid}, {head}, 1")
    a(f"s_lshl_b32 {st2}, {sid}, 3\ns_add_u32 {st2}, {st2}, {st}\ns_mul_i32 {sid}, {sid}, 768\ns_add_u32 {st}, {st}, {sid}")
    a(f"v_rcp_f32 {mx[0]}, {O[12]}")
    for j in range(6): a(f"v_pk_mul_f32 {O[2*j:2*j+2]}, {O[2*j:2*j+2]}, {mx} op_sel_hi:[1,0]")
    for j in range(6): a(f"v_cvt_pk_bf16_f32 {O[j]}, {O[2*j]}, {O[2*j+1]}")
    a(f"buffer_store_dwordx4 {O[0:4]}, {t}, {rof}, {st} offen")
    a(f"s_mov_b32 exec_hi, 0")
    a(f"buffer_store_dwordx2 {O[4:6]}, {vo}, {rof}, {st2} offen offset:512")
    T(); a("s_waitcnt vmcnt(0)" if DIAG else ""); T.flush()
    a("Lk1_end:\ns_endpgm")
    return dict(name='k1_kernel', lines=finish(a), vgpr=V.hi, agpr=0, grid=256, block=512, lds=L_K1END)

def interleave_items(a_items, b_items):
    out = []; n = len(a_items); m = len(b_items); k = 0
    for i, g in enumerate(a_items):
        out.append(g)
        tgt = (i + 1) * m // n
        while k < tgt: out.append(b_items[k]); k += 1
    return out


def role_wg(a, sid):
    T = Stamps(a, 2); T()
    S = Alloc('s', 60, 100); V = Alloc('v', 1, 128)
    rw, rf, rmp, rup = S(4), S(4), S(4), S(4)
    ksp, cgp, wv, t0, t1 = S(), S(), S(), S(), S()
    lane, t, u, voff, vmo, vmv, vmr = V(), V(), V(), V(), V(), V(), V()
    a(f"s_and_b32 {ksp}, {sid}, 7\ns_lshr_b32 {cgp}, {sid}, 3")
    a(f"v_lshrrev_b32 {t}, 6, v0\nv_and_b32 {lane}, 63, v0\nv_readfirstlane_b32 {wv}, {t}")
    a(f"v_lshrrev_b32 {u}, 3, {lane}\nv_mul_u32_u24 {voff}, 3456, {u}\nv_and_b32 {u}, 7, {lane}\nv_lshl_add_u32 {voff}, {u}, 4, {voff}")
    a(f"s_mul_i32 {t0}, {ksp}, 320\nv_lshl_add_u32 {vmo}, {lane}, 3, {t0}")
    LMV = 20480
    a(f"v_lshlrev_b32 {vmv}, 9, {t}\nv_lshrrev_b32 {u}, 5, {lane}\nv_lshl_add_u32 {vmr}, {u}, 4, {vmv}\nv_lshl_add_u32 {vmv}, {lane}, 2, {vmv}")
    a("s_waitcnt lgkmcnt(0)")
    a(f"s_cmp_lt_u32 {wv}, 2\ns_cselect_b32 {rw[0]}, s{P['wg']}, s{P['wu']}\ns_cselect_b32 {rw[1]}, s{P['wg']+1}, s{P['wu']+1}")
    a(f"s_mov_b32 {rw[2]}, {640*1728*2:#x}\ns_mov_b32 {rw[3]}, 0x20000")
    a(f"s_and_b32 {t1}, {wv}, 1\ns_mul_i32 {t1}, {t1}, {40*3456}\ns_mul_i32 {t0}, {ksp}, {80*3456}\ns_add_u32 {t0}, {t0}, {t1}\ns_lshl_b32 {t1}, {cgp}, 7\ns_add_u32 {t0}, {t0}, {t1}")
    a(f"s_mul_i32 {t1}, {wv}, 5120")
    for i in range(5):
        a(f"s_add_u32 m0, {t1}, {1024*i}")
        a(f"buffer_load_dwordx4 {voff}, {rw}, {t0} offen lds")
        if i < 4: a(f"s_add_u32 {t0}, {t0}, {8*3456}")
    srd(a, rmp, 'ws', WS_MODP, SZ_MODP)
    mp = modvec_load(a, V, rmp, vmo, t0, 4*640, 3*640)
    srd(a, rf, 'ws', WS_WGF, SZ_WGF); srd(a, rup, 'ws', WS_UP, SZ_UP)
    vtr, vo, one = V(), V(), V()
    a(f"v_lshrrev_b32 {t}, 5, {lane}\nv_bfe_u32 {u}, {lane}, 2, 2\nv_lshl_add_u32 {t}, {t}, 3, {u}\nv_lshlrev_b32 {vtr}, 7, {t}")
    a(f"v_bfe_u32 {t}, {lane}, 4, 1\nv_mul_u32_u24 {t}, 10240, {t}\nv_add_u32 {vtr}, {vtr}, {t}")
    a(f"v_and_b32 {t}, 1, {lane}\nv_lshl_add_u32 {vtr}, {t}, 4, {vtr}\nv_bfe_u32 {t}, {lane}, 1, 1\nv_lshl_add_u32 {vtr}, {t}, 3, {vtr}")
    a(f"s_lshl_b32 {t1}, {wv}, 5\nv_add_u32 {vtr}, {t1}, {vtr}")
    a(f"v_lshlrev_b32 {vo}, 4, {lane}\nv_mov_b32 {one}, {ONES_BF:#x}")
    modvec_finish(a, mp, vmv, LMV)
    a("s_waitcnt vmcnt(0)\ns_barrier")
    fr = [V(4) for _ in range(5)]; sp = [V(4) for _ in range(5)]; sap = [V(4) for _ in range(5)]
    msk, tmp, acc = V(8), V(8), V(2)
    for k in range(5):
        for uu in range(2): a(f"ds_read_b64_tr_b16 {fr[k][2*uu:2*uu+2]}, {vtr} offset:{(16*k+4*uu)*128}")
        a(f"ds_read_b128 {sp[k]}, {vmr} offset:{LMV+32*k}\nds_read_b128 {sap[k]}, {vmr} offset:{LMV+256+32*k}")
    a(f"s_lshl_b32 {t0}, {cgp}, 2\ns_add_u32 {t0}, {t0}, {wv}\ns_mul_i32 {t1}, {ksp}, 108\ns_add_u32 {t1}, {t1}, {t0}\ns_lshl_b32 {t1}, {t1}, 8")
    a(f"s_mul_i32 {t0}, {t0}, 40960\ns_mul_i32 {cgp}, {ksp}, 5120\ns_add_u32 {t0}, {t0}, {cgp}\ns_add_u32 {cgp}, {t0}, 4096")
    for k in range(5):
        a('\n'.join(scale_ops([fr[k]], [acc[1]], k == 0, sp[k], sap[k], msk, tmp, [acc[0]], one)))
        a(f"buffer_store_dwordx4 {fr[k]}, {vo}, {rf}, {t0 if k<4 else cgp} offen offset:{1024*(k&3)}")
    a(f"v_permlane32_swap_b32 {acc[0]}, {acc[1]}\nv_add_f32 {acc[0]}, {acc[0]}, {acc[1]}\nv_lshlrev_b32 {vo}, 2, {lane}")
    a(f"buffer_store_dword {acc[0]}, {vo}, {rup}, {t1} offen")
    a("s_waitcnt vmcnt(0)" if DIAG else ""); T.flush()
    a("s_endpgm")
    return V.hi

def gen_narrow(name, NK, kind):
    a = Asm()
    S = Alloc('s', 40, 100); V = Alloc('v', 1, 256)
    load_args(a)
    extra = 216 if kind == 'wo' else 0
    a(f"s_cmp_ge_u32 s2, 256\ns_cbranch_scc1 L{name}_other")
    T = Stamps(a, 2 if kind == 'wo' else 4); T()
    rx, rw, rm, rr, ro, rs = S(4), S(4), S(4), S(4), S(4), S(4)
    rb, cb, wv, st, st2, sxo, swo, slds = S(), S(), S(), S(), S(), S(), S(), S()
    lane, l16, t, u = V(), V(), V(), V()
    a(f"s_bfe_u32 {rb}, s2, 0x20001\ns_lshl_b32 {rb}, {rb}, 3\ns_lshr_b32 {st}, s2, 5\ns_add_u32 {rb}, {rb}, {st}")
    a(f"s_and_b32 {cb}, s2, 1\ns_lshl_b32 {cb}, {cb}, 2\ns_bfe_u32 {st}, s2, 0x20003\ns_add_u32 {cb}, {cb}, {st}")
    a(f"v_lshrrev_b32 {t}, 6, v0\nv_and_b32 {lane}, 63, v0\nv_readfirstlane_b32 {wv}, {t}")
    a(f"v_lshlrev_b32 {l16}, 4, {lane}")
    a(f"s_lshl_b32 {sxo}, {rb}, 2\ns_add_u32 {sxo}, {sxo}, {wv}\ns_mul_i32 {sxo}, {sxo}, {NK*1024}")
    a(f"s_mul_i32 {slds}, {wv}, 5120\ns_mul_i32 {swo}, {cb}, {NK*5120}\ns_add_u32 {swo}, {swo}, {slds}")
    a("s_waitcnt lgkmcnt(0)")
    if kind == 'wo':
        srd(a, rx, 'ws', WS_OF, SZ_ACT16); srd(a, rw, 'ws', WS_WOF, SZ_WOF)
    else:
        srd(a, rx, 'ws', WS_ACTF, SZ_ACTF); srd(a, rw, 'ws', WS_WDF, SZ_WDF)
    D = 3; NSL = 4
    nst = (NK + 3)//4
    X = [V(16) for _ in range(D+1)]
    wf = [V(20) for _ in range(2)]
    acc = V(20)
    def loads(i):
        o = []
        for c in range(5):
            g = []
            if c in (0, 4):
                g += [f"s_add_u32 {st2}, {swo}, {i*20480 + c*1024}", f"s_add_u32 m0, {slds}, {(i%NSL)*20480 + c*1024}"]
            g += [f"@tag w{i}", f"buffer_load_dwordx4 {l16}, {rw}, {st2} offen offset:{(c&3)*1024} lds"]
            o.append(g)
        for k in range(min(4, NK - 4*i)):
            g = [f"s_add_u32 {st2}, {sxo}, {i*4096}"] if k == 0 else []
            g.append(f"buffer_load_dwordx4 {X[i%(D+1)][4*k:4*k+4]}, {l16}, {rx}, {st2} offen offset:{k*1024}")
            o.append(g)
        return o
    for i in range(D):
        for g in loads(i): a('\n'.join(g))
    gm = V(20); xr = V(10); vrm, vrm2, vfr, vfr2, vg, vg2 = V(), V(), V(), V(), V(), V()
    srd(a, rm, 'ws', WS_MOD, SZ_MOD)
    srd(a, rr, 'x' if kind == 'wo' else 'out', 0, SZ_ACT16)
    srd(a, ro, 'ws', WS_X1F, SZ_ACT16)
    if kind == 'wo': srd(a, rs, 'ws', WS_ST2, SZ_ST2)
    srm, sfr, sg = S(), S(), S()
    a(f"v_lshrrev_b32 {t}, 4, {lane}\nv_and_b32 {u}, 15, {lane}")
    a(f"v_mul_u32_u24 {vrm2}, 1280, {u}\nv_lshl_add_u32 {vrm}, {t}, 4, {vrm2}\nv_lshl_add_u32 {vrm2}, {t}, 3, {vrm2}")
    a(f"v_lshlrev_b32 {vfr2}, 4, {u}\nv_lshl_add_u32 {vfr}, {t}, 9, {vfr2}")
    a(f"v_lshlrev_b32 {vg}, 5, {t}\nv_lshlrev_b32 {vg2}, 4, {t}")
    a(f"v_lshrrev_b32 {u}, 1, {t}\nv_lshl_add_u32 {vfr2}, {u}, 9, {vfr2}\nv_and_b32 {u}, 1, {t}\nv_lshl_add_u32 {vfr2}, {u}, 3, {vfr2}")
    a(f"s_lshl_b32 {srm}, {rb}, 2\ns_add_u32 {srm}, {srm}, {wv}\ns_mul_i32 {srm}, {srm}, {16*1280}\ns_mul_i32 {st}, {cb}, 160\ns_add_u32 {srm}, {srm}, {st}")
    a(f"s_lshr_b32 {st}, {wv}, 1\ns_lshl_b32 {sfr}, {rb}, 1\ns_add_u32 {sfr}, {sfr}, {st}\ns_mul_i32 {sfr}, {sfr}, 40960\ns_mul_i32 {st}, {cb}, 5120\ns_add_u32 {sfr}, {sfr}, {st}")
    a(f"s_and_b32 {st}, {wv}, 1\ns_lshl_b32 {st}, {st}, 8\ns_add_u32 {sfr}, {sfr}, {st}")
    a(f"s_mul_i32 {sg}, {cb}, 320\ns_add_u32 {sg}, {sg}, {(2 if kind=='wo' else 5)*2560}")
    sfr2 = S(); a(f"s_add_u32 {sfr2}, {sfr}, 4096")
    epi = [[f"buffer_load_dwordx4 {gm[4*q:4*q+4]}, {vg}, {rm}, {sg} offen offset:{128*(q>>1) + 16*(q&1)}"] for q in range(4)]
    epi.append([f"buffer_load_dwordx4 {gm[16:20]}, {vg2}, {rm}, {sg} offen offset:256"])
    def rowmaj(op, regs): return [[f"buffer_{op}_dwordx4 {regs[0:4]}, {vrm}, {rr}, {srm} offen"], [f"buffer_{op}_dwordx4 {regs[4:8]}, {vrm}, {rr}, {srm} offen offset:64"], [f"buffer_{op}_dwordx2 {regs[8:10]}, {vrm2}, {rr}, {srm} offen offset:128"]]
    def fragmaj(op, regs): return [[f"buffer_{op}_dwordx4 {regs[0:4]}, {vfr}, {ro}, {sfr} offen"], [f"buffer_{op}_dwordx4 {regs[4:8]}, {vfr}, {ro}, {sfr} offen offset:2048"], [f"buffer_{op}_dwordx2 {regs[8:10]}, {vfr2}, {ro}, {sfr2} offen"]]
    epi += rowmaj('load', xr) if kind == 'wo' else fragmaj('load', xr)
    vw2 = V(); a(f"v_add_u32 {vw2}, 40960, {l16}")
    def rd_w(ks):
        i, k = divmod(ks, 4); off = (i % NSL)*20480 + k*5120
        base = l16
        if off >= 40960: base, off = vw2, off - 40960
        return [f"ds_read_b128 {wf[ks&1][4*c:4*c+4]}, {base} offset:{off + c*1024}" for c in range(5)]
    for i in range(nst):
        if i == 0: T()
        a(f"@waitvm w{i}\ns_barrier")
        if i in (0, nst//2): T()
        nk = min(4, NK - 4*i)
        a('\n'.join(rd_w(4*i)))
        main = []
        for k in range(nk):
            ks = 4*i + k
            nx = rd_w(ks+1) if k + 1 < nk else [None]*5
            for c in range(5):
                cc = acc[4*c:4*c+4]
                g = [nx[c]] if nx[c] else []
                main.append(g + [f"v_mfma_f32_16x16x32_bf16 {cc}, {wf[ks&1][4*c:4*c+4]}, {X[i%(D+1)][4*k:4*k+4]}, {cc if ks else 0}"])
        fill = loads(i+D) if i + D < nst else (epi if i + D == nst else [])
        for l in interleave(main, fill): a(l)
    T()
    f = wf[0]
    for j in range(10): a(f"v_lshlrev_b32 {f[2*j]}, 16, {xr[j]}\nv_and_b32 {f[2*j+1]}, 0xffff0000, {xr[j]}")
    for j in range(10): a(f"v_pk_fma_f32 {f[2*j:2*j+2]}, {acc[2*j:2*j+2]}, {gm[2*j:2*j+2]}, {f[2*j:2*j+2]}")
    for j in range(10): a(f"v_cvt_pk_bf16_f32 {xr[j]}, {f[2*j]}, {f[2*j+1]}")
    for g in (fragmaj('store', xr) if kind == 'wo' else rowmaj('store', xr)): a('\n'.join(g))
    if kind == 'wo':
        one, sm, sq = V(), V(), V()
        a(f"v_mov_b32 {one}, {ONES_BF:#x}")
        for j in range(10):
            a(f"v_dot2_f32_bf16 {sm}, {xr[j]}, {one}, {sm if j else 0}\nv_dot2_f32_bf16 {sq}, {xr[j]}, {xr[j]}, {sq if j else 0}")
        a(f"v_and_b32 {u}, 15, {lane}\nv_lshlrev_b32 {u}, 6, {u}\nv_lshrrev_b32 {t}, 5, {lane}\nv_lshl_add_u32 {u}, {t}, 2, {u}")
        a(f"s_lshl_b32 {st}, {rb}, 2\ns_add_u32 {st}, {st}, {wv}\ns_lshl_b32 {st}, {st}, 10\ns_lshl_b32 {st2}, {cb}, 3\ns_add_u32 {st}, {st}, {st2}")
        a(f"v_permlane32_swap_b32 {sm}, {sq}\nv_add_f32 {sm}, {sm}, {sq}\nv_mov_b32 {sq}, {sm}\nv_permlane16_swap_b32 {sm}, {sq}\nv_add_f32 {sm}, {sm}, {sq}")
        a(f"buffer_store_dword {sm}, {u}, {rs}, {st} offen")
    T(); a("s_waitcnt vmcnt(0)" if DIAG else ""); T.flush()
    a("s_endpgm")
    lines = auto_wait(a.lines)
    b = Asm(); b.label(f"L{name}_other"); hi = V.hi
    if extra:
        b(f"s_sub_u32 s3, s2, 256\ns_cmp_lt_u32 s3, {extra}\ns_cbranch_scc1 L{name}_wg\ns_endpgm\nL{name}_wg:")
        hi = max(hi, role_wg(b, Reg('s', 3)))
    else: b("s_endpgm")
    lines += auto_wait(b.lines)
    lines, _ = fix_hazards(lines)
    return dict(name=name + '_kernel', lines=lines, vgpr=hi, agpr=0, grid=256 + extra, block=256, lds=NSL*20480)

def gen_k3():
    a = Asm()
    S = Alloc('s', 40, 100); V = Alloc('v', 1, 256)
    load_args(a)
    a("s_cmp_ge_u32 s2, 256\ns_cbranch_scc1 Lk3_end")
    T = Stamps(a, 3); T()
    rx, rw, ru, rs, ro = S(4), S(4), S(4), S(4), S(4)
    rb, cb, u0, wv, st, st2, sxo, swo, slds = S(), S(), S(), S(), S(), S(), S(), S(), S()
    lane, l16, t, u = V(), V(), V(), V()
    a(f"s_and_b32 {rb}, s2, 1\ns_lshl_b32 {rb}, {rb}, 3\ns_lshr_b32 {st}, s2, 5\ns_add_u32 {rb}, {rb}, {st}")
    a(f"s_bfe_u32 {cb}, s2, 0x20001\ns_lshl_b32 {cb}, {cb}, 2\ns_bfe_u32 {st}, s2, 0x20003\ns_add_u32 {cb}, {cb}, {st}")
    a(f"s_mul_i32 {u0}, {cb}, 7\ns_mul_i32 {st}, {cb}, 6\ns_add_u32 {st}, {st}, 11\ns_min_u32 {u0}, {u0}, {st}")
    a(f"v_lshrrev_b32 {t}, 6, v0\nv_and_b32 {lane}, 63, v0\nv_readfirstlane_b32 {wv}, {t}")
    a(f"v_lshlrev_b32 {l16}, 4, {lane}")
    a(f"s_lshl_b32 {sxo}, {rb}, 2\ns_add_u32 {sxo}, {sxo}, {wv}\ns_mul_i32 {sxo}, {sxo}, 40960")
    a(f"s_mul_i32 {slds}, {wv}, 7168\ns_mul_i32 {swo}, {u0}, 40960\ns_lshl_b32 {st}, {wv}, 10\ns_add_u32 {swo}, {swo}, {st}")
    a("s_waitcnt lgkmcnt(0)")
    srd(a, rx, 'ws', WS_X1F, SZ_ACT16); srd(a, rw, 'ws', WS_WGF, SZ_WGF)
    D = 3; NSL = 4; nst = 10; SL = 28672; L_U = NSL*SL
    X = [V(16) for _ in range(D+1)]
    wf = [V(28) for _ in range(2)]
    acc = V(112)
    def loads(i):
        o = []
        for c in range(7):
            o.append([f"s_add_u32 {st2}, {swo}, {c*40960 + i*4096}", f"s_add_u32 m0, {slds}, {(i%NSL)*SL + c*1024}",
                      f"@tag w{i}", f"buffer_load_dwordx4 {l16}, {rw}, {st2} offen lds"])
        for k in range(4):
            g = [f"s_add_u32 {st2}, {sxo}, {i*4096}"] if k == 0 else []
            g.append(f"buffer_load_dwordx4 {X[i%(D+1)][4*k:4*k+4]}, {l16}, {rx}, {st2} offen offset:{k*1024}")
            o.append(g)
        return o
    for i in range(D):
        for g in loads(i): a('\n'.join(g))
    srd(a, ru, 'ws', WS_UP, SZ_UP); srd(a, rs, 'ws', WS_ST2, SZ_ST2); srd(a, ro, 'ws', WS_ACTF, SZ_ACTF)
    vw2 = V(); a(f"v_add_u32 {vw2}, {2*SL}, {l16}")
    vu, vs_, mr, rstd = V(), V(), V(2), V(2)
    a(f"v_lshlrev_b32 {vu}, 3, v0\nv_and_b32 {vs_}, 31, {lane}\nv_lshlrev_b32 {vs_}, 6, {vs_}")
    def rd_w(ks):
        i, k = divmod(ks, 4); off = (i % NSL)*SL + k*7168
        base = l16
        if off >= 2*SL: base, off = vw2, off - 2*SL
        return [f"ds_read_b128 {wf[ks&1][4*c:4*c+4]}, {base} offset:{off + c*1024}" for c in range(7)]
    UPR = X[(7+D) % (D+1)]; STR = X[(8+D) % (D+1)]
    for i in range(nst):
        if i == 0: T()
        a(f"@waitvm w{i}")
        if i == 9: a("s_waitcnt lgkmcnt(0)")
        a("s_barrier")
        if i in (0, 5): T()
        a('\n'.join(rd_w(4*i)))
        main = []
        for k in range(4):
            ks = 4*i + k
            nx = rd_w(ks+1) if k < 3 else [None]*7
            for c in range(7):
                cc = acc[16*c:16*c+16]
                g = [nx[c]] if nx[c] else []
                main.append(g + [f"v_mfma_f32_32x32x16_bf16 {cc}, {wf[ks&1][4*c:4*c+4]}, {X[i%(D+1)][4*k:4*k+4]}, {cc if ks else 0}"])
        if i + D < nst: fill = loads(i+D)
        elif i == 7:
            fill = [[f"s_lshl_b32 {st}, {u0}, 8"]]
            fill += [[f"s_add_u32 {st2}, {st}, {p*108*256}", f"buffer_load_dwordx2 {UPR[2*p:2*p+2]}, {vu}, {ru}, {st2} offen"] for p in range(8)]
        elif i == 8:
            fill = [[f"s_lshl_b32 {st}, {rb}, 2", f"s_add_u32 {st}, {st}, {wv}", f"s_lshl_b32 {st}, {st}, 11"]]
            fill += [[f"buffer_load_dwordx4 {STR[4*p:4*p+4]}, {vs_}, {rs}, {st} offen offset:{16*p}"] for p in range(4)]
            fill += [[]]*8
            fill += [[f"v_pk_add_f32 {UPR[2*p:2*p+2]}, {UPR[2*p:2*p+2]}, {UPR[2*p+8:2*p+10]}"] for p in range(4)]
            fill += [[f"v_pk_add_f32 {UPR[2*p:2*p+2]}, {UPR[2*p:2*p+2]}, {UPR[2*p+4:2*p+6]}"] for p in range(2)]
            fill += [[f"v_pk_add_f32 {UPR[0:2]}, {UPR[0:2]}, {UPR[2:4]}"], [f"v_add_u32 {vu}, {L_U}, {vu}"], [f"ds_write_b64 {vu}, {UPR[0:2]}"]]
        else:
            fill = [[]]*6
            fill += [[f"v_pk_add_f32 {STR[2*p:2*p+2]}, {STR[2*p:2*p+2]}, {STR[2*p+8:2*p+10]}"] for p in range(4)]
            fill += [[f"v_pk_add_f32 {STR[2*p:2*p+2]}, {STR[2*p:2*p+2]}, {STR[2*p+4:2*p+6]}"] for p in range(2)]
            fill += [[f"v_pk_add_f32 {STR[0:2]}, {STR[0:2]}, {STR[2:4]}"]]
            fill += [[f"v_mul_f32 {STR[0]}, {f2u(1/640):#x}, {STR[0]}"], [f"v_mov_b32 {STR[2]}, {f2u(1e-5):#x}"],
                     [f"v_fmac_f32 {STR[2]}, {f2u(1/640):#x}, {STR[1]}"], [f"v_fma_f32 {STR[2]}, -{STR[0]}, {STR[0]}, {STR[2]}"],
                     [f"v_rsq_f32 {rstd[0]}, {STR[2]}"], [f"v_lshrrev_b32 {vu}, 5, {lane}"], [f"v_mul_f32 {mr[0]}, {STR[0]}, {rstd[0]}"],
                     [f"v_lshlrev_b32 {vu}, 4, {vu}"], [f"v_add_u32 {vu}, {L_U}, {vu}"]]
        for l in interleave(main, fill): a(l)
    T()
    vo = V(); nl = V(2); onep = V(2)
    a(f"v_bfe_u32 {t}, {lane}, 4, 1\nv_mul_u32_u24 {vo}, 55296, {t}\nv_and_b32 {u}, 15, {lane}\nv_lshl_add_u32 {vo}, {u}, 4, {vo}\nv_lshrrev_b32 {u}, 5, {lane}\nv_lshl_add_u32 {vo}, {u}, 8, {vo}")
    a(f"s_lshl_b32 {st}, {rb}, 2\ns_add_u32 {st}, {st}, {wv}\ns_mul_i32 {st}, {st}, {2*55296}\ns_lshl_b32 {st2}, {u0}, 9\ns_add_u32 {st}, {st}, {st2}")
    a(f"v_mov_b32 {nl[0]}, {LOG2E | 0x80000000:#x}\nv_mov_b32 {onep[0]}, 1.0")
    ub = [Reg('v', X[0].idx, 32), Reg('v', X[2].idx, 32)]
    assert X[1].idx == X[0].idx + 16 and X[3].idx == X[2].idx + 16
    def rd_u(c): return [f"ds_read_b128 {ub[c&1][4*q:4*q+4]}, {vu} offset:{c*256 + (q>>2)*128 + (q&3)*32}" for q in range(8)]
    e = wf[0]
    a('\n'.join(rd_u(0)))
    for c in range(7):
        if c < 6: a('\n'.join(rd_u(c+1)))
        U = ub[c&1]; A = acc[16*c:16*c+16]
        for j in range(8): a(f"v_pk_fma_f32 {U[16+2*j:18+2*j]}, {U[2*j:2*j+2]}, {mr}, {U[16+2*j:18+2*j]} op_sel_hi:[1,0,1] neg_lo:[0,1,0] neg_hi:[0,1,0]")
        for j in range(8): a(f"v_pk_fma_f32 {A[2*j:2*j+2]}, {A[2*j:2*j+2]}, {rstd}, {U[16+2*j:18+2*j]} op_sel_hi:[1,0,1]")
        for j in range(4): a(f"v_pk_mul_f32 {e[2*j:2*j+2]}, {A[2*j:2*j+2]}, {nl} op_sel_hi:[1,0]")
        for j in range(8): a(f"v_exp_f32 {e[j]}, {e[j]}")
        for j in range(4): a(f"v_pk_mul_f32 {A[2*j:2*j+2]}, {A[2*j:2*j+2]}, {A[8+2*j:10+2*j]}")
        for j in range(4): a(f"v_pk_add_f32 {e[2*j:2*j+2]}, {e[2*j:2*j+2]}, {onep} op_sel_hi:[1,0]")
        for j in range(8): a(f"v_rcp_f32 {e[j]}, {e[j]}")
        for j in range(4): a(f"v_pk_mul_f32 {A[2*j:2*j+2]}, {A[2*j:2*j+2]}, {e[2*j:2*j+2]}")
        for j in range(4): a(f"v_cvt_pk_bf16_f32 {A[8+j]}, {A[2*j]}, {A[2*j+1]}")
        a(f"buffer_store_dwordx4 {A[8:12]}, {vo}, {ro}, {st} offen offset:{c*512}")
    T(); a("s_waitcnt vmcnt(0)" if DIAG else ""); T.flush()
    a("Lk3_end:\ns_endpgm")
    return dict(name='k3_kernel', lines=finish(a), vgpr=V.hi, agpr=0, grid=256, block=256, lds=L_U + 2048)

def gen_k0():
    a = Asm()
    load_args(a)
    roles = [('wq', 160, role_wq), ('xn', 128, role_xn), ('mod', 240, role_mod), ('wn', 148, role_wn)]
    hi = 0
    a("s_mov_b32 s3, s2")
    for n, cnt, f in roles:
        a(f"s_cmp_lt_u32 s3, {cnt}\ns_cbranch_scc1 Lk0_{n}\ns_sub_u32 s3, s3, {cnt}")
    a("s_endpgm")
    out = list(a.lines)
    for n, cnt, f in roles:
        b = Asm(); b.label(f"Lk0_{n}")
        hi = max(hi, f(b, Reg('s', 3)))
        out += auto_wait(b.lines)
    out, _ = fix_hazards(out)
    return dict(name='k0_kernel', lines=out, vgpr=hi, agpr=0, grid=sum(r[1] for r in roles), block=256, lds=20480)

def build(kernels, path):
    hdr = open('adaLN_cond__sliding_block__swiglu_ffn__prompt.s.ref').read().split('\n')
    hdr = [l for l in hdr if l.startswith(';') and '@launch' not in l and 'Override launch' not in l and 'grid=ceil' not in l]
    s = '\n'.join(hdr) + '\n'
    for k in kernels: s += f"; @launch kernel={k['name']} grid=({k['grid']},1,1) block=({k['block']},1,1) lds={k['lds']}\n"
    s += '.amdgcn_target "amdgcn-amd-amdhsa--gfx950"\n.text\n'
    seen = set()
    for k in kernels:
        if k['name'] in seen: continue
        seen.add(k['name']); s += kernel_text(k['name'], k['lines'])
    s += '.section .rodata,"a"\n'
    seen = set()
    for k in kernels:
        if k['name'] in seen: continue
        seen.add(k['name']); s += kd_text(k['name'], k['vgpr'], k['agpr'])
    open(path, 'w').write(s)

if __name__ == '__main__':
    if '--diag' in sys.argv: DIAG = 1
    if '--cyc' in sys.argv: DIAG = 2
    if '--hd' in sys.argv: DIAG = 3
    build([gen_k0(), gen_k1(), gen_narrow('k2', 20, 'wo'), gen_k3(), gen_narrow('k4', 54, 'wd')], sys.argv[1] if len(sys.argv) > 1 else 'k.s')
```

```python
import sys, re; sys.path.insert(0,'tools')
import gen
from gen import *
def mk(): return [gen_k0(), gen_k1(), gen_narrow('k2', 20, 'wo'), gen_k3(), gen_narrow('k4', 54, 'wd')]
def pre(nld, blk):
    L = ["s_load_dwordx2 s[40:41], s[0:1], 24", "s_mov_b32 s42, 0x280000", "s_mov_b32 s43, 0x20000", f"s_mul_i32 s44, s2, 10240", "v_lshlrev_b32 v1, 4, v0", "s_waitcnt lgkmcnt(0)"]
    for j in range(nld): L += [f"buffer_load_dwordx4 v[4:7], v1, s[40:43], s44 offen", f"s_add_u32 s44, s44, {blk*16}"]
    L += ["s_waitcnt vmcnt(0)", "s_endpgm"]
    return dict(name='pre_kernel', lines=L, vgpr=8, agpr=0, grid=256, block=blk, lds=0)
build([pre(0,128)] + mk(), 'v_p0.s')
build([pre(1,64)] + mk(), 'v_p1.s')
build([pre(2,128)] + mk(), 'v_p4.s')
build([pre(5,128)] + mk(), 'v_p10.s')
build(mk() + [pre(5,128)], 'v_p10post.s')
```
